```python
import torch

def _softmax(x, axis=-1):
    return torch.softmax(x, dim=axis)

def _gelu(x):
    return torch.nn.functional.gelu(x, approximate='tanh')

def _silu(x):
    return torch.nn.functional.silu(x)

def _sigmoid(x):
    return torch.sigmoid(x)

def _layernorm(x, axis=-1, eps=1e-05):
    m = x.mean(dim=axis, keepdim=True)
    v = x.var(dim=axis, keepdim=True, unbiased=False)
    return (x - m) / torch.sqrt(v + eps)

def _scatter_add(tgt, idx, src, axis=0):
    return tgt.clone().index_add_(axis, idx, src)

def _segment_sum(src, seg, n):
    out = torch.zeros((n,) + src.shape[1:], dtype=src.dtype)
    return out.index_add_(0, seg, src)

def _pad(x, pw):
    flat = tuple((v for pair in reversed(pw) for v in pair))
    return torch.nn.functional.pad(x, flat)
kernel_name = 'adaLN_cond__sliding_block_cached__glu_gated_geglu__prompt'

def setup_inputs():

    _w = lambda a: (lambda t: t.to(torch.bfloat16) if t.is_floating_point() else t)(torch.as_tensor(a))

    def _A_setup():
        B, Sq, D = (1, 2048, 576)
        Hq, Hkv, Sk, Dh = (32, 16, 2048, 128)
        assert Hq % Hkv == 0, (Hq, Hkv)
        return {'x': _w((lambda *s: torch.randn(*s, dtype=torch.bfloat16) * 0.05)(B, Sq, D)), 'k_cache': _w((lambda *s: torch.randn(*s, dtype=torch.bfloat16) * 1.6)(B, Hkv, Sk, Dh)), 'v_cache': _w((lambda *s: torch.randn(*s, dtype=torch.bfloat16) * 0.8)(B, Hkv, Sk, Dh)), 'wq': _w((lambda *s: torch.randn(*s, dtype=torch.bfloat16) * 1.6)(D, Hq * Dh) * D ** (-0.5)), 'wo': _w((lambda *s: torch.randn(*s, dtype=torch.bfloat16) * 0.8)(Hq * Dh, D) * (Hq * Dh) ** (-0.5))}
    _A_in = _A_setup()

    def _B_setup():
        B, S, Dm, Df = (1, 2048, 576, 4608)
        return {'x': _w((lambda *s: torch.randn(*s, dtype=torch.bfloat16) * 0.05)(B, S, Dm)), 'w_gate': _w((lambda *s: torch.randn(*s, dtype=torch.bfloat16) * 0.8)(Dm, Df) * Dm ** (-0.5)), 'w_up': _w((lambda *s: torch.randn(*s, dtype=torch.bfloat16) * 0.8)(Dm, Df) * Dm ** (-0.5)), 'w_down': _w((lambda *s: torch.randn(*s, dtype=torch.bfloat16) * 0.8)(Df, Dm) * Df ** (-0.5))}
    _B_in = _B_setup()
    return {'A_x': _A_in['x'], 'A_k_cache': _A_in['k_cache'], 'A_v_cache': _A_in['v_cache'], 'A_wq': _A_in['wq'], 'A_wo': _A_in['wo'], 'B_x': _B_in['x'], 'B_w_gate': _B_in['w_gate'], 'B_w_up': _B_in['w_up'], 'B_w_down': _B_in['w_down'], 'c': _w((lambda *s: torch.randn(*s, dtype=torch.bfloat16) * 0.1)(1, 576) * 8.0), 'w_mod': _w((lambda *s: torch.randn(*s, dtype=torch.bfloat16) * 0.1)(576, 6 * 576) * 576 ** (-0.5) * 8.0)}

def reference(A_x, A_k_cache, A_v_cache, A_wq, A_wo, B_x, B_w_gate, B_w_up, B_w_down, c, w_mod):

    def _A_ref(x, k_cache, v_cache, wq, wo):
        B, Sq, D = x.shape
        Hq, Dh = (32, 128)
        Hkv, Sk = (k_cache.shape[1], k_cache.shape[2])
        W = min(4096, max(256, Sk // 4))
        rep = Hq // Hkv
        q = (lambda x, *d: x.permute(*d))((x @ wq).reshape(B, Sq, Hq, Dh), 0, 2, 1, 3)
        k = (lambda x, n, axis: torch.repeat_interleave(x, n, dim=axis))(k_cache[:, :, Sk - W:, :], rep, axis=1)
        v = (lambda x, n, axis: torch.repeat_interleave(x, n, dim=axis))(v_cache[:, :, Sk - W:, :], rep, axis=1)
        scores = torch.einsum('bhqd,bhkd->bhqk', q, k) * Dh ** (-0.5)
        p = _softmax(scores, axis=-1)
        o = torch.einsum('bhqk,bhkd->bhqd', p, v)
        return (lambda x, *d: x.permute(*d))(o, 0, 2, 1, 3).reshape(B, Sq, Hq * Dh) @ wo

    def _B_ref(x, w_gate, w_up, w_down):
        g = torch.einsum('bsd,df->bsf', x, w_gate)
        u = torch.einsum('bsd,df->bsf', x, w_up)
        h = _gelu(g) * u
        return torch.einsum('bsf,fd->bsd', h, w_down)
    x = A_x
    mod = (_silu(c) @ w_mod).reshape(c.shape[0], 6, 1, -1)
    sa, ca, ga, sb, cb, gb = (mod[:, 0].clone(), mod[:, 1].clone(), mod[:, 2].clone(), mod[:, 3].clone(), mod[:, 4].clone(), mod[:, 5].clone())
    h = _layernorm(x, axis=-1) * (1 + ca) + sa
    x = x + ga * _A_ref(h, A_k_cache, A_v_cache, A_wq, A_wo)
    h = _layernorm(x, axis=-1) * (1 + cb) + sb
    x = x + gb * _B_ref(h, B_w_gate, B_w_up, B_w_down)
    return x
```

```python
import re
TRANS = ('v_exp_f32','v_log_f32','v_rcp_f32','v_rsq_f32','v_sqrt_f32','v_sin_f32','v_cos_f32')
def regs(tok):
    tok = tok.strip()
    m = re.fullmatch(r'(-|\|)?([vs])(\d+)\|?', tok)
    if m: return [(m.group(2), int(m.group(3)))]
    m = re.fullmatch(r'([vs])\[(\d+):(\d+)\]', tok)
    if m: return [(m.group(1), i) for i in range(int(m.group(2)), int(m.group(3))+1)]
    if tok == 'vcc': return [('s', 106), ('s', 107)]
    if tok == 'exec': return [('s', 126), ('s', 127)]
    if tok == 'm0': return [('s', 124)]
    return []
class I:
    def __init__(s, txt):
        s.txt = txt
        t = txt.split(';')[0].strip()
        p = t.split(None, 1)
        s.op = p[0]
        ops = [o.strip() for o in p[1].split(',')] if len(p) > 1 else []
        if ops:
            last = ops[-1].split()
            s.mods = ' '.join(last[1:]); ops[-1] = last[0] if last else ''
        else: s.mods = ''
        op = s.op; s.w = []; s.r = []; s.srcc = []; s.ws = 1
        R = [regs(o) for o in ops]
        flat = lambda L: [x for l in L for x in l]
        if op.startswith('v_mfma'):
            s.k = 'mfma'; s.w = R[0]; s.r = R[1] + R[2]; s.srcc = R[3]
        elif op.startswith('v_'):
            s.k = 'trans' if op.replace('_e32','').replace('_e64','') in TRANS else 'valu'
            s.w = R[0]; s.r = flat(R[1:])
            if op.startswith('v_permlane') and 'swap' in op: s.w = R[0] + R[1]; s.r = R[0] + R[1]
            if op.startswith('v_cndmask') and len(ops) == 3: s.r += regs('vcc')
            if op in ('v_fmac_f32', 'v_mac_f32', 'v_dot2c_f32_bf16'): s.r += R[0]
            if op.startswith('v_add_co') or op.startswith('v_addc_co'): s.w = R[0] + R[1]; s.r = flat(R[2:])
        elif op.startswith('buffer_') or op.startswith('global_'):
            s.k = 'vmem'
            if 'lds' in s.mods.split(): s.r = flat(R) + regs('m0'); s.k2 = 'dma'
            elif 'load' in op: s.w = R[0]; s.r = flat(R[1:])
            else: s.r = flat(R); s.data = R[0] if op.startswith('buffer') else R[1]
        elif op.startswith('ds_'):
            s.k = 'ds'
            if 'read' in op or 'permute' in op or 'swizzle' in op: s.w = R[0]; s.r = flat(R[1:])
            else: s.r = flat(R)
        elif op == 's_nop': s.k = 'nop'; s.ws = int(ops[0]) + 1
        elif op.endswith(':'): s.k = 'label'; s.ws = 0
        elif op.startswith('s_'):
            s.k = 'salu'
            if op.startswith('s_cmp') or op.startswith('s_cbranch') or op in ('s_branch','s_waitcnt','s_barrier','s_endpgm','s_setprio','s_sleep'):
                s.r = flat(R)
            else:
                s.w = R[0]; s.r = flat(R[1:])
                if 'saveexec' in op: s.w = s.w + regs('exec')
        else: s.k = 'other'; s.ws = 0
def need(a, b):
    n = 0
    ov = lambda x, y: bool(set(x) & set(y))
    va = a.k in ('valu', 'trans')
    vb = b.k in ('valu', 'trans')
    aw_v = [x for x in a.w if x[0] == 'v']; aw_s = [x for x in a.w if x[0] == 's']
    if va:
        if b.k == 'mfma' and ov(aw_v, b.r + b.srcc): n = max(n, 2)
        if b.k == 'mfma' and ov(aw_s, regs('exec')): n = max(n, 4)
        if b.k == 'vmem' and ov(aw_s, b.r): n = max(n, 5)
        if vb and ov(aw_s, b.r): n = max(n, 2)
        if vb and ('readlane' in b.op or 'readfirstlane' in b.op) and ov(aw_v, b.r): n = max(n, 1)
        if a.k == 'trans' and b.k != 'trans' and ov(aw_v, b.r + b.srcc): n = max(n, 1)
        if vb and ('permlane' in b.op or 'row_' in b.mods or 'quad_perm' in b.mods) and ov(aw_v, b.r): n = max(n, 2)
    if a.k == 'mfma':
        if b.k == 'mfma':
            if ov(a.w, b.r): n = max(n, 12)
            if ov(a.w, b.srcc) and a.w != b.srcc: n = max(n, 10)
            if ov(a.w, b.w) and a.w != b.srcc: n = max(n, 10)
        elif b.k in ('valu', 'trans', 'vmem', 'ds'):
            if ov(a.w, b.r + b.w): n = max(n, 12)
            if ov(a.srcc, b.w): n = max(n, 7)
    if a.k == 'salu' and ov(a.w, regs('m0')) and getattr(b, 'k2', '') == 'dma': n = max(n, 1)
    if a.k == 'vmem' and len(getattr(a, 'data', [])) > 2 and vb and ov(a.data, b.w): n = max(n, 2)
    return n
class Asm:
    def __init__(s): s.L = []; s.vm = []; s.lg = []; s.uid = 0
    def __call__(s, txt, tag=None):
        for line in txt.strip().split('\n'):
            line = line.strip()
            if not line or line.startswith(';'): continue
            ins = I(line)
            gap = 0; reqd = 0
            for p in reversed(s.L[-24:]):
                if gap >= 12: break
                reqd = max(reqd, need(p, ins) - gap)
                gap += p.ws
            if reqd > 0: s.L.append(I('s_nop %d' % (reqd - 1)))
            s.L.append(ins)
            if ins.k == 'vmem': s.vm.append(tag)
            if ins.k == 'ds': s.lg.append(tag)
    def label(s, base='L'):
        s.uid += 1; return '%s_%d' % (base, s.uid)
    def cnt(s, q, tag):
        idx = max(i for i, t in enumerate(q) if t == tag)
        return len(q) - 1 - idx
    def wvm(s, tag):
        n = s.cnt(s.vm, tag); assert n <= 63; s('s_waitcnt vmcnt(%d)' % n)
    def wlg(s, tag):
        n = min(s.cnt(s.lg, tag), 15); s('s_waitcnt lgkmcnt(%d)' % n)
    def check_branches(s):
        lab = {i.op[:-1]: k for k, i in enumerate(s.L) if i.k == 'label'}
        for k, i in enumerate(s.L):
            if i.op.startswith('s_cbranch') or i.op == 's_branch':
                tgt = lab[i.txt.split()[1]]
                pre = s.L[max(0, k-24):k+1]; post = s.L[tgt:tgt+24]
                g2 = 0
                for b in post:
                    gap = g2
                    for a in reversed(pre):
                        if need(a, b) > gap: raise Exception('branch hazard: %s -> %s via %s' % (a.txt, b.txt, i.txt))
                        gap += a.ws
                    g2 += b.ws
    def text(s):
        s.check_branches()
        return '\n'.join(('' if i.k == 'label' else '  ') + i.txt for i in s.L) + '\n'
def vr(a, n): return 'v[%d:%d]' % (a, a+n-1) if n > 1 else 'v%d' % a
def sr(a, n): return 's[%d:%d]' % (a, a+n-1) if n > 1 else 's%d' % a
```

```python
from asm import *
from small import *
MF = 'v_mfma_f32_32x32x16_bf16'
def mf(d, A, B, c=None): return f'{MF} {vr(d,16)}, {vr(A,4)}, {vr(B,4)}, ' + (vr(d,16) if c is None else c)
def weave(a, mfmas, fill):
    n = len(mfmas); k = 0
    for i, m in enumerate(mfmas):
        m()
        e = (len(fill) * (i + 1) + n - 1) // n
        while k < e: a(*fill[k]); k += 1
def merge(*ls):
    it = sorted(((j + 0.5) / len(l), i, j) for i, l in enumerate(ls) for j in range(len(l)))
    return [ls[i][j] for _, i, j in it]
def dma(vo, s, soff): return f'buffer_load_dwordx4 v{vo}, s[{s}:{s+3}], {soff} offen lds'
def lanebits(a):
    a('''v_and_b32 v1, 63, v0
    v_lshrrev_b32 v8, 6, v0
    v_readfirstlane_b32 s24, v8
    v_lshrrev_b32 v8, 5, v1
    v_bfe_u32 v9, v1, 2, 2
    v_bfe_u32 v10, v1, 4, 1
    v_and_b32 v11, 3, v1
    v_lshlrev_b32 v12, 1, v11
    v_lshrrev_b32 v13, 1, v11
    v_or_b32 v12, v12, v13
    v_and_b32 v12, 3, v12
    v_bfe_u32 v13, v1, 3, 2
    v_mul_u32_u24 v2, 9216, v13
    v_lshl_add_u32 v2, v8, 7, v2
    v_and_b32 v13, 7, v1
    v_lshl_add_u32 v2, v13, 4, v2''')
def gemm_phase(a, nst, per, reads, mfma, ring, dist, pre_stage, extra):
    N = nst * per
    def rd(i):
        st, j = divmod(i, per)
        if j == 0: pre_stage(st)
        for t in reads(st, j, ring[i % len(ring)]): a(t, ('f', i))
    for i in range(dist): rd(i)
    for i in range(N):
        st, j = divmod(i, per)
        a.wlg(('f', i))
        a(mfma(st, j, ring[i % len(ring)]))
        if i + dist < N: rd(i + dist)
        for t in extra(st, j): a(*t)
SL = lambda i: 32768 + 32768 * (i % 4)
def k_attn():
    a = Asm(); guard(a, 256)
    srd(a, 4, 24, 576*8192); srd(a, 8, 8, 16*524288); srd(a, 12, 16, 16*524288); srd(a, 16, 32, 4096*1152); srd(a, 20, 104, WS_SZ)
    lanebits(a)
    a(f'''s_and_b32 s25, s2, 7
    s_bfe_u32 s26, s2, 0x10003
    s_lshl_b32 s26, s26, 3
    s_add_u32 s25, s25, s26
    s_lshr_b32 s26, s2, 4
    s_and_b32 s28, s24, 3
    s_lshr_b32 s29, s24, 2
    s_lshl_b32 s30, s24, 10
    s_lshl_b32 s31, s26, 2
    s_add_u32 s31, s31, s28
    s_mul_i32 s31, s31, 36864
    s_add_u32 s32, s31, {WS_H}
    s_mul_i32 s33, s25, {PSZ}
    s_add_u32 s33, s33, s31
    s_lshl_b32 s34, s29, 9
    s_add_u32 s33, s33, s34
    s_add_u32 s33, s33, {WS_PA}
    s_lshl_b32 s34, s25, 9
    s_lshl_b32 s35, s25, 19
    s_add_u32 s35, s35, {1536*256}
    s_mul_i32 s36, s25, {256*1152}
    ; vDq
    s_lshl_b32 s37, s24, 1
    v_add_u32 v13, s37, v8
    v_and_b32 v14, 3, v13
    v_bfe_u32 v15, v1, 2, 3
    v_xor_b32 v14, v14, v15
    v_lshlrev_b32 v3, 13, v13
    v_lshl_add_u32 v3, v14, 6, v3
    v_lshl_add_u32 v3, v11, 4, v3
    s_lshl_b32 s37, s24, 2
    v_lshrrev_b32 v13, 4, v1
    v_add_u32 v14, s37, v13
    v_and_b32 v15, 15, v1
    v_xor_b32 v7, v15, v14
    v_and_b32 v7, 15, v7
    v_lshlrev_b32 v4, 8, v14
    v_lshl_add_u32 v5, v15, 4, v4
    v_lshl_add_u32 v4, v7, 4, v4
    v_lshlrev_b32 v13, 6, v13
    v_xor_b32 v5, v5, v13
    ; vDo
    s_lshl_b32 s37, s24, 3
    v_lshrrev_b32 v13, 3, v1
    v_add_u32 v13, s37, v13
    v_mul_u32_u24 v6, 1152, v13
    v_bfe_u32 v13, v1, 2, 1
    v_xor_b32 v13, v13, v10
    v_lshl_add_u32 v6, v13, 6, v6
    v_lshl_add_u32 v6, v11, 4, v6
    ; aQ[0..3] v16..19
    v_lshl_add_u32 v13, v8, 3, v9
    v_lshlrev_b32 v16, 9, v13
    s_lshl_b32 s37, s29, 2
    v_xor_b32 v13, s37, v9
    v_lshl_add_u32 v16, v13, 6, v16
    v_lshl_add_u32 v16, v10, 5, v16
    v_lshl_add_u32 v16, v12, 3, v16
    v_add_u32 v16, {SL(0)}, v16
    v_xor_b32 v17, 64, v16
    v_xor_b32 v18, 0x80, v16
    v_xor_b32 v19, 0xc0, v16
    ; aV[0..3] v20..23
    v_lshl_add_u32 v13, v8, 2, v9
    v_lshlrev_b32 v20, 8, v13
    v_lshl_add_u32 v20, v9, 6, v20
    v_lshl_add_u32 v20, v10, 5, v20
    v_lshl_add_u32 v20, v11, 3, v20
    v_add_u32 v20, {SL(8)}, v20
    v_xor_b32 v21, 64, v20
    v_xor_b32 v22, 0x80, v20
    v_xor_b32 v23, 0xc0, v20
    ; aK[0..7] v24..31
    v_and_b32 v13, 31, v1
    v_lshlrev_b32 v24, 8, v13
    v_and_b32 v13, 15, v1
    v_xor_b32 v13, v13, v8
    v_lshl_add_u32 v24, v13, 4, v24''')
    for s in range(1, 8): a(f'v_xor_b32 v{24+s}, {s<<5}, v24')
    a(f'''v_lshl_add_u32 v13, v8, 2, v9
    v_lshlrev_b32 v15, 7, v13
    v_lshrrev_b32 v13, 1, v9
    v_xor_b32 v13, s29, v13
    v_lshl_add_u32 v15, v13, 6, v15
    v_lshl_add_u32 v15, v10, 5, v15
    v_lshl_add_u32 v15, v12, 3, v15
    v_lshlrev_b32 v14, 4, v1
    s_waitcnt lgkmcnt(0)''')
    HB, AQ, QP = 112, 48, 224
    def piece(vo, sd, m0, soff_reg, soff_add, tag):
        return [(f's_add_u32 m0, s30, {m0}\n s_add_u32 s38, {soff_reg}, {soff_add}\n ' + dma(vo, sd, 's38'), tag)]
    def loads(idx):
        L = []
        if idx < 9:
            for q in range(4): L += piece(3, 4, SL(idx) + q*8192, 's34', idx*524288 + q*131072, ('d', idx))
            L += [(f's_add_u32 s38, s32, {idx*1024}', None)]
            for j in range(4): L += [(f'buffer_load_dwordx4 {vr(HB+16*idx+4*j,4)}, v2, s[20:23], s38 offen offset:{256*j}', ('d', idx))]
        elif idx < 17:
            t = idx - 9
            for q in range(2): L += piece(5, 12, SL(idx) + q*8192, 's35', t*16384 + q*8192, ('d', idx))
            for q in range(2): L += piece(4, 8, SL(idx) + 16384 + q*8192, 's35', (t+1)*16384 + q*8192, ('d', idx))
        else:
            for q in range(4): L += piece(6, 16, SL(idx) + q*8192, 's36', q*64*1152 + (idx-17)*128, ('d', idx))
        return L
    for q in range(2):
        for t in piece(4, 8, q*8192, 's35', q*8192, 'k0'): a(*t)
    for idx in range(3):
        for t in loads(idx): a(*t)
    pend = []
    def pre_q(st):
        a.wvm(('d', st)); a('s_waitcnt lgkmcnt(0)\n s_barrier')
        if st > 0:
            for r in range(16, 20): a(f'v_add_u32 v{r}, {(SL(st)-SL(st-1)) & 0xffffffff}, v{r}')
        pend.extend(loads(st + 3))
    def ex(st, j): return [pend.pop(0)] if pend else []
    gemm_phase(a, 9, 16,
        lambda st, j, b: [f'ds_read_b64_tr_b16 {vr(b+2*t,2)}, v{16+(j&3)} offset:{(16*(j>>2)+4*t)*512}' for t in range(2)],
        lambda st, j, b: mf(AQ+16*(j&3), b, HB+16*st+4*(j>>2), '0' if st == 0 and j < 4 else None),
        [32, 36, 40, 44], 3, pre_q, ex)
    assert not pend
    O, S0, S1, NM, P, KF = 48, 112, 128, 144, 160, 168
    VF = [32, 36, 40, 44, 200, 204, 208, 212]
    kread = lambda base: [(f'ds_read_b128 {vr(KF+4*s,4)}, v{24+s} offset:{base}', ('k', s)) for s in range(8)]
    for t in kread(0): a(*t)
    a('s_mov_b32 s38, 0x3e0293ee')
    for i in range(0, 64, 2):
        a(f'v_mul_f32 v{AQ+i}, s38, v{AQ+i}\n v_mul_f32 v{AQ+i+1}, s38, v{AQ+i+1}\n v_cvt_pk_bf16_f32 v{QP+i//2}, v{AQ+i}, v{AQ+i+1}')
    def qk(Sn, c0):
        def f(s):
            def g(): a.wlg(('k', s)); a(mf(Sn, KF+4*s, QP+4*s, c0 if s == 0 else None))
            return g
        return [f(s) for s in range(8)]
    weave(a, qk(S0, '0'), [(f'v_mov_b32 v{O+i}, 0', None) for i in range(64)])
    for t in kread(8192): a(*t)
    def vmax(Sn):
        L = [(f'v_max3_f32 v8, v{Sn}, v{Sn+1}, v{Sn+2}', None), (f'v_max3_f32 v9, v{Sn+3}, v{Sn+4}, v{Sn+5}', None)]
        for i in range(6, 14, 4): L += [(f'v_max3_f32 v8, v8, v{Sn+i}, v{Sn+i+1}', None), (f'v_max3_f32 v9, v9, v{Sn+i+2}, v{Sn+i+3}', None)]
        return L + [(f'v_max3_f32 v8, v8, v{Sn+14}, v{Sn+15}', None), ('v_max_f32 v8, v8, v9', None)]
    a('v_mov_b32 v7, 0\n s_mov_b32 s27, 0\n s_mov_b32 s39, 0x41000000')
    for r in range(24, 32): a(f'v_add_u32 v{r}, {SL(8)+16384}, v{r}')
    for t in vmax(S0): a(*t)
    a('v_mov_b32 v9, v8\n v_permlane32_swap_b32 v8, v9\n v_max_f32 v8, v8, v9')
    for i in range(16): a(f'v_sub_f32 v{S0+i}, v{S0+i}, v8\n v_sub_f32 v{NM+i}, 0, v8')
    a(f's_mov_b32 s40, {SL(8)}\n s_mov_b32 s41, {SL(12)}\n s_add_u32 s42, s35, {3*16384}\n s_mov_b32 s43, s36')
    rare = []
    def block(Sc, Sn, kb, last, dmaf):
        vrd = [(f'ds_read_b64_tr_b16 {vr(VF[4*ks+db]+2*t,2)}, v{20+db} offset:{kb*8192+(16*ks+8*t)*256}', ('v', ks, db)) for ks in range(2) for db in range(4) for t in range(2)]
        ex = []
        for i in range(0, 16, 2):
            ex += [(f'v_exp_f32 v{Sc+i}, v{Sc+i}', None), (f'v_exp_f32 v{Sc+i+1}, v{Sc+i+1}', None)]
            if i: ex += [(f'v_cvt_pk_bf16_f32 v{P+i//2-1}, v{Sc+i-2}, v{Sc+i-1}', None)]
        ex += [(f'v_cvt_pk_bf16_f32 v{P+7}, v{Sc+14}, v{Sc+15}', None)]
        if last:
            for t in merge(vrd, ex): a(*t)
            a('s_waitcnt lgkmcnt(0)\n s_barrier')
        else: weave(a, qk(Sn, vr(NM, 16)), merge(vrd, ex))
        dmaf()
        def pv(ks, db):
            def g(): a.wlg(('v', ks, db)); a(mf(O+16*db, VF[4*ks+db], P+4*ks))
            return g
        sm = [(f'v_add_f32 v10, v{Sc}, v{Sc+1}', None)] + [(f'v_add_f32 v{10 if i&1 else 7}, v{10 if i&1 else 7}, v{Sc+i}', None) for i in range(2, 16)] + [('v_add_f32 v7, v7, v10', None)]
        return [pv(ks, db) for ks in range(2) for db in range(4)], sm
    def finish(Sc, Sn, pvs, sm, kr, chk):
        weave(a, pvs, merge(kr, sm + vmax(Sn)) if chk and kr else (sm + vmax(Sn) if chk else sm))
        if chk:
            l1, l2 = a.label('rare'), a.label('back')
            a(f'v_cmp_lt_f32 vcc, s39, v8\n s_cbranch_vccnz {l1}\n {l2}:')
            rare.append((l1, l2, Sn))
    KO = 's_add_u32 s38, s27, 4\n s_and_b32 s38, s38, 7\n s_lshl_b32 s38, s38, 14\n s_add_u32 s38, s38, s35'
    def dma_half(h, static_wo):
        def f():
            kv = f'''s_add_u32 m0, s41, s30
              s_add_u32 m0, m0, {h*16384}
              {KO if h else 's_mov_b32 s38, s42'}
              {dma(4 if h else 5, 8 if h else 12, 's38')}
              s_add_u32 m0, m0, 8192
              s_add_u32 s38, s38, 8192
              {dma(4 if h else 5, 8 if h else 12, 's38')}'''
            wo = f'''s_add_u32 m0, s41, s30
              s_add_u32 m0, m0, {h*16384}
              s_add_u32 s38, s43, {h*128*1152}
              {dma(6, 16, 's38')}
              s_add_u32 m0, m0, 8192
              s_add_u32 s38, s38, {64*1152}
              {dma(6, 16, 's38')}'''
            if static_wo: a(wo, ('d', 19)); return
            l1, l2 = a.label('wo'), a.label('dj')
            a(f's_cmp_lt_u32 s27, 5\n s_cbranch_scc0 {l1}'); a(kv); a(f's_branch {l2}\n {l1}:'); a(wo); a(f'{l2}:')
            if h: a('s_cmp_lt_u32 s27, 5\n s_cselect_b32 s38, 0, 128\n s_add_u32 s43, s43, s38\n s_add_u32 s42, s42, 16384')
        return f
    def iteration(last):
        a('''s_waitcnt vmcnt(8) lgkmcnt(0)
        s_barrier
        s_add_u32 s44, s40, 32768
        s_cmp_eq_u32 s44, 163840
        s_cselect_b32 s44, 32768, s44
        s_sub_u32 s45, s44, s40
        s_mov_b32 s41, s40
        s_mov_b32 s40, s44''')
        for r in range(20, 32): a(f'v_add_u32 v{r}, s45, v{r}')
        pvs, sm = block(S0, S1, 0, False, dma_half(0, last))
        finish(S0, S1, pvs, sm, [] if last else kread(0), True)
        pvs, sm = block(S1, S0, 1, last, dma_half(1, last))
        finish(S1, S0, pvs, sm, [] if last else kread(8192), not last)
    a('att_loop:')
    iteration(False)
    a('s_add_u32 s27, s27, 1\n s_cmp_lt_u32 s27, 7\n s_cbranch_scc1 att_loop')
    a.vm += [('d', 17)] * 4 + [('d', 18)] * 4
    iteration(True)
    OW, OP, C0, PK = 112, 144, 176, 208
    a('v_mov_b32 v9, v7\n v_permlane32_swap_b32 v7, v9\n v_add_f32 v7, v7, v9\n v_rcp_f32 v7, v7')
    a(f'''s_lshl_b32 s38, s24, 13
    v_add_u32 v13, s38, v14
    s_xor_b32 s38, s38, 32768
    v_add_u32 v14, s38, v14
    s_lshl_b32 s38, s29, 14
    s_add_u32 s38, s38, {SL(17)}
    v_add_u32 v16, s38, v15
    v_xor_b32 v17, 0x4000, v16''')
    for i in range(0, 64, 2):
        a(f'v_mul_f32 v{O+i}, v7, v{O+i}\n v_mul_f32 v{O+i+1}, v7, v{O+i+1}\n v_cvt_pk_bf16_f32 v{OW+i//2}, v{O+i}, v{O+i+1}')
        if i % 8 == 6: a(f'ds_write_b128 v13, {vr(OW+i//2-3,4)} offset:{(i//8)*1024}')
    def pre_o(st):
        a.wvm(('d', 17+st)); a('s_waitcnt lgkmcnt(0)\n s_barrier')
        if st > 0:
            for r in (16, 17): a(f'v_add_u32 v{r}, {(SL(17+st)-SL(16+st)) & 0xffffffff}, v{r}')
        if st == 1: pend.extend(loads(20))
        if 1 <= st <= 5: pend.extend(loads(20 + st))
    def outp(st):
        C = C0 + 16*(st & 1); K = PK + 8*(st & 1)
        L = [(f'v_cvt_pk_bf16_f32 v{K+i}, v{C+2*i}, v{C+2*i+1}', None) for i in range(8)]
        L.insert(4, (f's_add_u32 s46, s33, {st*1024}\n buffer_store_dwordx4 {vr(K,4)}, v2, s[20:23], s46 offen', 'st'))
        return L + [(f'buffer_store_dwordx4 {vr(K+4,4)}, v2, s[20:23], s46 offen offset:256', 'st')]
    def ex_o(st, j):
        L = []
        if st == 0 and j == 0: L += [(f'ds_read_b128 {vr(OP+4*i,4)}, v14 offset:{1024*i}', 'op') for i in range(8)]
        if st > 0 and 3 <= j < 8: L += outp(st-1)[2*(j-3):2*(j-3)+2]
        if pend and (j >= 8 or j < 3) : L.append(pend.pop(0))
        return L
    gemm_phase(a, 9, 16,
        lambda st, j, b: [f'ds_read_b64_tr_b16 {vr(b+2*t,2)}, v{16+(j>>3)} offset:{(16*(j&7)+8*t)*128}' for t in range(2)],
        lambda st, j, b: mf(C0+16*(st&1), b, (OW if j < 8 else OP)+4*(j&7), '0' if j == 0 else None),
        [32, 36, 40, 44, 48, 52], 4, pre_o, ex_o)
    assert not pend
    for t in outp(8): a(*t)
    a('s_endpgm')
    for l1, l2, Sn in rare:
        a(f'''{l1}:
        s_nop 11
        v_mov_b32 v9, v8
        v_permlane32_swap_b32 v8, v9
        v_max3_f32 v8, v8, v9, 0
        v_sub_f32 v9, 0, v8
        v_exp_f32 v9, v9''')
        for i in range(16): a(f'v_sub_f32 v{Sn+i}, v{Sn+i}, v8\n v_sub_f32 v{NM+i}, v{NM+i}, v8')
        for i in range(64): a(f'v_mul_f32 v{O+i}, v9, v{O+i}')
        a(f'v_mul_f32 v7, v9, v7\n s_nop 1\n s_branch {l2}')
    return a, 256, 256, 512, 163840
SF = lambda i: 36864 * (i % 4)
def k_ffn():
    a = Asm(); guard(a, 256)
    srd(a, 4, 48, 576*9216); srd(a, 8, 56, 576*9216); srd(a, 16, 64, 4608*1152); srd(a, 20, 104, WS_SZ)
    lanebits(a)
    a(f'''s_and_b32 s25, s2, 7
    s_bfe_u32 s26, s2, 0x10003
    s_lshl_b32 s26, s26, 3
    s_add_u32 s25, s25, s26
    s_lshr_b32 s26, s2, 4
    s_and_b32 s28, s24, 3
    s_lshr_b32 s29, s24, 2
    s_mul_i32 s30, s24, 4608
    s_lshl_b32 s31, s26, 2
    s_add_u32 s31, s31, s28
    s_mul_i32 s31, s31, 36864
    s_add_u32 s32, s31, {WS_H2}
    s_mul_i32 s33, s25, {PSZ}
    s_add_u32 s33, s33, s31
    s_lshl_b32 s34, s29, 9
    s_add_u32 s33, s33, s34
    s_add_u32 s33, s33, {WS_PB}
    s_mul_i32 s34, s25, 576
    s_mul_i32 s35, s28, {8*9216}
    s_add_u32 s34, s34, s35
    s_mul_i32 s36, s25, {288*1152}
    s_mul_i32 s35, s24, {36*1152}
    s_add_u32 s36, s36, s35
    s_lshl_b32 s37, s29, 1''')
    for q in range(5):
        a(f'''v_add_u32 v13, {64*q}, v1
        v_mul_u32_u24 v14, 1821, v13
        v_lshrrev_b32 v14, 16, v14
        v_mul_u32_u24 v15, 36, v14
        v_sub_u32 v13, v13, v15
        v_xor_b32 v13, s37, v13
        v_mul_u32_u24 v{3+q}, 9216, v14
        v_lshl_add_u32 v{3+q}, v13, 4, v{3+q}''')
        if 0 < q < 4: a(f'v_subrev_u32 v{3+q}, {1024*q}, v{3+q}')
    a(f'''; vDd -> v19
    v_lshrrev_b32 v13, 3, v1
    v_mul_u32_u24 v19, 1152, v13
    v_bfe_u32 v13, v1, 2, 1
    v_xor_b32 v13, v13, v10
    v_lshl_add_u32 v19, v13, 6, v19
    v_lshl_add_u32 v19, v11, 4, v19
    ; aG -> v16
    v_lshl_add_u32 v13, v8, 3, v9
    v_mul_u32_u24 v16, 576, v13
    v_lshl_add_u32 v16, v11, 3, v16
    v_mul_u32_u24 v13, 18432, v10
    v_add_u32 v16, v16, v13
    v_xor_b32 v13, s29, v10
    v_lshl_add_u32 v16, v13, 5, v16
    v_lshl_add_u32 v13, v8, 2, v9
    v_lshlrev_b32 v17, 7, v13
    v_lshrrev_b32 v13, 1, v9
    v_xor_b32 v13, s29, v13
    v_lshl_add_u32 v17, v13, 6, v17
    v_lshl_add_u32 v17, v10, 5, v17
    v_lshl_add_u32 v17, v12, 3, v17
    s_lshl_b32 s38, s29, 11
    v_add_u32 v17, s38, v17
    v_xor_b32 v18, 0x800, v17
    v_add_u32 v17, {SF(18)}, v17
    v_add_u32 v18, {SF(18)}, v18
    v_lshlrev_b32 v13, 4, v1
    s_mul_i32 s38, s24, 9216
    v_add_u32 v20, s38, v13
    s_xor_b32 s38, s24, 4
    s_mul_i32 s38, s38, 9216
    v_add_u32 v21, s38, v13
    v_mov_b32 v22, 0xc0135761
    s_mov_b32 s39, 0xbdd2d3e8
    s_waitcnt lgkmcnt(0)
    s_cmp_eq_u32 s29, 0
    s_cselect_b32 s4, s4, s8
    s_cselect_b32 s5, s5, s9''')
    ACC, HR = 112, 64
    half = lambda t: f's_mov_b32 exec_hi, 0\n {t}\n s_mov_b32 exec_hi, -1'
    def loads(idx):
        tg = ('d', idx)
        if idx < 18:
            L = [(f's_add_u32 m0, s30, {SF(idx)}\n s_add_u32 s38, s34, {idx*32*9216}\n ' + dma(3, 4, 's38'), tg)]
            L += [(dma(3+q, 4, 's38').replace(' lds', f' offset:{1024*q} lds'), tg) for q in range(1, 4)]
            L += [(f's_add_u32 m0, m0, 4096\n ' + half(dma(7, 4, 's38')), tg)]
            L += [(f's_add_u32 s40, s32, {idx*512}\n buffer_load_dwordx4 {vr(HR+8*(idx%4),4)}, v2, s[20:23], s40 offen', tg)]
            L += [(f'buffer_load_dwordx4 {vr(HR+8*(idx%4)+4,4)}, v2, s[20:23], s40 offen offset:256', tg)]
            return L
        L = []
        for q in range(5):
            d = dma(19, 16, 's38')
            L += [(f's_add_u32 m0, s30, {SF(idx)+1024*q}\n s_add_u32 s38, s36, {q*8*1152+(idx-18)*128}\n ' + (half(d) if q == 4 else d), tg)]
        return L
    for idx in range(3):
        for t in loads(idx): a(*t)
    pend = []
    def pre_g(st):
        a.wvm(('d', st)); a('s_waitcnt lgkmcnt(0)\n s_barrier')
        if st > 0: a(f'v_add_u32 v16, {(SF(st)-SF(st-1)) & 0xffffffff}, v16')
        if st + 3 < 20: pend.extend(loads(st + 3))
    HW, HP, C0, PK = 64, 112, 160, 192
    def geglu(i):
        A = ACC + 16*i
        for r in range(0, 8, 2):
            T = [24, 25]
            for k in range(2): a(f'v_mul_f32 v{T[k]}, v{A+r+k}, v{A+r+k}')
            for k in range(2): a(f'v_fma_f32 v{T[k]}, v{T[k]}, s39, v22')
            for k in range(2): a(f'v_mul_f32 v{T[k]}, v{T[k]}, v{A+r+k}')
            for k in range(2): a(f'v_exp_f32 v{T[k]}, v{T[k]}')
            for k in range(2): a(f'v_mul_f32 v{A+r+k}, v{A+r+k}, v{A+r+k+8}')
            for k in range(2): a(f'v_add_f32 v{T[k]}, 1.0, v{T[k]}')
            for k in range(2): a(f'v_rcp_f32 v{T[k]}, v{T[k]}')
            a('s_nop 0')
            for k in range(2): a(f'v_mul_f32 v{A+r+k}, v{A+r+k}, v{T[k]}')
            a(f'v_cvt_pk_bf16_f32 v{HX[i]+r//2}, v{A+r}, v{A+r+1}')
    HX = [80, 84, 88, 92, 96, 100, 104, 64, 68]
    wr = lambda i: a(f'ds_write_b128 v20, {vr(HX[i],4)} offset:{1024*i}')
    def ex(st, j):
        if st == 17 and j >= 11:
            geglu(j - 11)
            if j == 14:
                a('s_waitcnt lgkmcnt(0)\n s_barrier')
                for i in range(4): wr(i)
            if j > 14: wr(j - 11)
        return [pend.pop(0)] if pend else []
    gemm_phase(a, 18, 18,
        lambda st, j, b: [f'ds_read_b64_tr_b16 {vr(b+2*t,2)}, v16 offset:{64*(j%9)+(16*(j//9)+4*t)*576}' for t in range(2)],
        lambda st, j, b: mf(ACC+16*(j%9), b, HR+8*(st%4)+4*(j//9), '0' if st == 0 and j < 9 else None),
        [32, 36, 40, 44, 48, 52], 4, pre_g, ex)
    assert not pend
    for i in (7, 8): geglu(i); wr(i)
    def pre_d(st):
        a.wvm(('d', 18+st)); a('s_waitcnt lgkmcnt(0)\n s_barrier')
        if st > 0:
            for r in (17, 18): a(f'v_add_u32 v{r}, {(SF(18+st)-SF(17+st)) & 0xffffffff}, v{r}')
        if 1 <= st <= 5: pend.extend(loads(21 + st))
    def outp(st):
        C = C0 + 16*(st & 1); K = PK + 8*(st & 1)
        L = [(f'v_cvt_pk_bf16_f32 v{K+i}, v{C+2*i}, v{C+2*i+1}', None) for i in range(8)]
        L.insert(4, (f's_add_u32 s46, s33, {st*1024}\n buffer_store_dwordx4 {vr(K,4)}, v2, s[20:23], s46 offen', 'st'))
        return L + [(f'buffer_store_dwordx4 {vr(K+4,4)}, v2, s[20:23], s46 offen offset:256', 'st')]
    def ex_d(st, j):
        L = []
        if st == 0 and j == 0: L += [(f'ds_read_b128 {vr(HP+4*i,4)}, v21 offset:{1024*i}', 'op') for i in range(9)]
        if st == 0 and j == 5: a('s_barrier'); pend.extend(loads(20) + loads(21))
        if st > 0 and 3 <= j < 8: L += outp(st-1)[2*(j-3):2*(j-3)+2]
        if pend and (j >= 8 or j < 3 or st == 0): L.append(pend.pop(0))
        return L
    gemm_phase(a, 9, 18,
        lambda st, j, b: [f'ds_read_b64_tr_b16 {vr(b+2*t,2)}, v{17+j//9} offset:{4096*(j%9)+1024*t}' for t in range(2)],
        lambda st, j, b: mf(C0+16*(st&1), b, HX[j] if j < 9 else HP+4*(j-9), '0' if j == 0 else None),
        [32, 36, 40, 44, 48, 52], 4, pre_d, ex_d)
    assert not pend
    for t in outp(8): a(*t)
    a('s_endpgm')
    return a, 256, 256, 512, 147456
```

```python
from asm import *
WS_MOD, WS_H, WS_X1, WS_H2, WS_PA, WS_PB, PSZ = 0, 0x10000, 0x300000, 0x600000, 0x1000000, 0x4000000, 2359296
WS_SZ = 0x8000000
def srd(a, d, koff, nbytes):
    a(f's_load_dwordx2 s[{d}:{d+1}], s[0:1], {koff}\n s_mov_b32 s{d+2}, {nbytes}\n s_mov_b32 s{d+3}, 0x00020000')
def guard(a, n):
    l = a.label('go')
    a(f's_cmp_lt_u32 s2, {n}\n s_cbranch_scc1 {l}\n s_endpgm\n {l}:')
def unpack(a, d, s, n):
    for i in range(n):
        a(f'v_lshlrev_b32 v{d+2*i}, 16, v{s+i}\n v_and_b32 v{d+2*i+1}, 0xffff0000, v{s+i}')
def k_mod():
    a = Asm(); guard(a, 54)
    srd(a, 4, 72, 1152); srd(a, 8, 80, 576*6912); srd(a, 12, 104, WS_SZ)
    a('''v_lshrrev_b32 v1, 3, v0
    v_and_b32 v2, 7, v0
    v_lshlrev_b32 v3, 4, v1
    s_mov_b32 s16, 55296
    v_mul_lo_u32 v4, v1, s16
    v_lshl_add_u32 v4, v2, 4, v4
    s_lshl_b32 s17, s2, 7
    s_waitcnt lgkmcnt(0)
    buffer_load_dwordx4 v[8:11], v3, s[4:7], 0 offen''')
    for j in range(8):
        a(f'buffer_load_dwordx4 v[{16+4*j}:{19+4*j}], v4, s[8:11], s17 offen\n s_add_u32 s17, s17, 6912')
    a('s_waitcnt vmcnt(8)')
    unpack(a, 48, 8, 4)
    for j in range(8):
        a(f'v_mul_f32 v{56+j}, 0xbfb8aa3b, v{48+j}\n v_exp_f32 v{56+j}, v{56+j}\n v_add_f32 v{56+j}, 1.0, v{56+j}\n v_rcp_f32 v{56+j}, v{56+j}\n v_mul_f32 v{48+j}, v{48+j}, v{56+j}')
    for j in range(4): a(f'v_cvt_pk_bf16_f32 v{8+j}, v{48+2*j}, v{49+2*j}')
    unpack(a, 48, 8, 4)
    for j in range(8):
        a(f's_waitcnt vmcnt({7-j})')
        unpack(a, 56, 16+4*j, 4)
        for c in range(8):
            a(f'v_mul_f32 v{64+c}, v{48+j}, v{56+c}' if j == 0 else f'v_fmac_f32 v{64+c}, v{48+j}, v{56+c}')
    a('''v_lshlrev_b32 v5, 5, v0
    ds_write_b128 v5, v[64:67]
    ds_write_b128 v5, v[68:71] offset:16
    v_and_b32 v6, 63, v0
    v_lshrrev_b32 v7, 6, v0
    v_lshlrev_b32 v6, 2, v6
    v_lshl_add_u32 v7, v7, 11, v6
    s_waitcnt lgkmcnt(0)
    s_barrier''')
    for i in range(8): a(f'ds_read_b32 v{16+i}, v7 offset:{256*i}')
    a('s_waitcnt lgkmcnt(0)')
    for i in range(1, 8): a(f'v_add_f32 v16, v16, v{16+i}')
    a('''v_lshlrev_b32 v5, 2, v0
    ds_write_b32 v5, v16 offset:18432
    s_waitcnt lgkmcnt(0)
    s_barrier
    v_readfirstlane_b32 s18, v0
    s_cmp_lt_u32 s18, 64
    s_cbranch_scc1 kmod_fin
    s_endpgm
    kmod_fin:''')
    for i in range(9): a(f'ds_read_b32 v{16+i}, v6 offset:{18432+256*i}')
    a('s_waitcnt lgkmcnt(0)')
    for i in range(1, 9): a(f'v_add_f32 v16, v16, v{16+i}')
    a('''v_cvt_pk_bf16_f32 v16, v16, v16
    v_lshlrev_b32 v16, 16, v16
    s_sub_u32 s19, s2, 9
    s_cmp_lt_u32 s19, 9
    s_cselect_b32 s20, 1.0, 0
    s_sub_u32 s19, s2, 36
    s_cmp_lt_u32 s19, 9
    s_cselect_b32 s20, 1.0, s20
    v_add_f32 v16, s20, v16
    v_cvt_pk_bf16_f32 v16, v16, v16
    v_lshlrev_b32 v16, 16, v16
    s_lshl_b32 s17, s2, 8
    buffer_store_dword v16, v6, s[12:15], s17 offen
    s_endpgm''')
    return a, 72, 54, 576, 18432+2304
def rowsum(a, v, t, ldsoff):
    a(f'''v_add_f32_dpp v{v}, v{v}, v{v} row_ror:8 row_mask:0xf bank_mask:0xf
    ds_swizzle_b32 v{t}, v{v} offset:0x401F
    s_waitcnt lgkmcnt(0)
    v_add_f32 v{v}, v{v}, v{t}
    v_mov_b32 v{t}, v{v}
    v_permlane32_swap_b32 v{v}, v{t}
    v_add_f32 v{v}, v{v}, v{t}
    ds_write_b32 v3, v{v} offset:{ldsoff}
    s_waitcnt lgkmcnt(0)
    s_barrier
    ds_read_b128 v[{t}:{t+3}], v2 offset:{ldsoff}
    ds_read_b128 v[{t+4}:{t+7}], v2 offset:{ldsoff+16}
    ds_read_b32 v{v}, v2 offset:{ldsoff+32}
    s_waitcnt lgkmcnt(0)''')
    for i in range(0, 8, 2): a(f'v_add_f32 v{t+i}, v{t+i}, v{t+i+1}')
    a(f'v_add_f32 v{t}, v{t}, v{t+2}\n v_add_f32 v{t+4}, v{t+4}, v{t+6}\n v_add_f32 v{v}, v{v}, v{t}\n v_add_f32 v{v}, v{v}, v{t+4}')
def k_ln(mode):
    a = Asm(); guard(a, 256)
    srd(a, 4, 0, PSZ); srd(a, 12, 104, WS_SZ); srd(a, 8, 88, PSZ)
    a('''v_lshlrev_b32 v1, 4, v0
    v_and_b32 v2, 7, v0
    v_lshrrev_b32 v5, 3, v0
    s_movk_i32 s16, 1152
    v_mul_lo_u32 v4, v2, s16
    v_lshl_add_u32 v4, v5, 4, v4
    v_lshlrev_b32 v5, 5, v5
    v_lshlrev_b32 v2, 6, v2
    v_lshrrev_b32 v3, 6, v0
    v_lshl_add_u32 v3, v3, 2, v2
    s_mul_i32 s16, s2, 9216
    s_waitcnt lgkmcnt(0)''')
    X, M, P, A, T = 8, 16, 48, 112, 120
    if mode == 5:
        a(f's_add_u32 s17, s16, {WS_X1}\n buffer_load_dwordx4 v[{X}:{X+3}], v1, s[12:15], s17 offen', 'x')
    else:
        a(f'buffer_load_dwordx4 v[{X}:{X+3}], v4, s[4:7], s16 offen', 'x')
    if mode != 1:
        a(f's_add_u32 s17, s16, {WS_PA if mode == 3 else WS_PB}')
        for p in range(16):
            a(f'buffer_load_dwordx4 v[{P+4*p}:{P+4*p+3}], v1, s[12:15], s17 offen', f'p{p}')
            if p < 15: a(f's_add_u32 s17, s17, {PSZ}')
    segs = {1: [0, 1], 3: [2, 3, 4], 5: [5]}[mode]
    for i, sg in enumerate(segs):
        a(f's_movk_i32 s18, {sg*2304}\n buffer_load_dwordx4 v[{M+8*i}:{M+8*i+3}], v5, s[12:15], s18 offen\n buffer_load_dwordx4 v[{M+8*i+4}:{M+8*i+7}], v5, s[12:15], s18 offen offset:16', 'm')
    if mode != 1:
        for p in range(16):
            a.wvm(f'p{p}')
            if p == 0: unpack(a, A, P, 4)
            else:
                unpack(a, T, P+4*p, 4)
                for c in range(8): a(f'v_add_f32 v{A+c}, v{A+c}, v{T+c}')
        a.wvm('m')
        unpack(a, T, X, 4)
        for c in range(8): a(f'v_fma_f32 v{A+c}, v{A+c}, v{M+c}, v{T+c}')
        for c in range(4): a(f'v_cvt_pk_bf16_f32 v{X+c}, v{A+2*c}, v{A+2*c+1}')
        if mode == 5:
            a(f'buffer_store_dwordx4 v[{X}:{X+3}], v4, s[8:11], s16 offen\n s_endpgm')
            return a, 136, 256, 576, 0
        a(f's_add_u32 s17, s16, {WS_X1}\n buffer_store_dwordx4 v[{X}:{X+3}], v1, s[12:15], s17 offen')
        M += 8
    else: a.wvm('x')
    unpack(a, A, X, 4)
    S = 6
    a(f'v_add_f32 v{S}, v{A}, v{A+1}')
    for c in range(2, 8): a(f'v_add_f32 v{S}, v{S}, v{A+c}')
    rowsum(a, S, T, 0)
    a(f'v_mul_f32 v{S}, 0x3ae38e39, v{S}')
    for c in range(8): a(f'v_sub_f32 v{A+c}, v{A+c}, v{S}')
    a(f'v_mul_f32 v{S}, v{A}, v{A}')
    for c in range(1, 8): a(f'v_fmac_f32 v{S}, v{A+c}, v{A+c}')
    rowsum(a, S, T, 512)
    a(f'v_mov_b32 v7, 0x3727c5ac\n v_fmac_f32 v7, 0x3ae38e39, v{S}\n v_rsq_f32 v7, v7')
    a.wvm('m')
    for c in range(8): a(f'v_mul_f32 v{A+c}, v{A+c}, v7\n v_fma_f32 v{A+c}, v{A+c}, v{M+8+c}, v{M+c}')
    for c in range(4): a(f'v_cvt_pk_bf16_f32 v{P+c}, v{A+2*c}, v{A+2*c+1}')
    a(f's_add_u32 s17, s16, {WS_H if mode == 1 else WS_H2}\n buffer_store_dwordx4 v[{P}:{P+3}], v1, s[12:15], s17 offen\n s_endpgm')
    return a, 136, 256, 576, 1024
```

```python
import sys, importlib
sys.path.insert(0, 'gen')
NAME = 'adaLN_cond__sliding_block_cached__glu_gated_geglu__prompt'
def build(kernels, out):
    ref = open(f'cdna_kernels/{NAME}.s.ref').read().split('\n')
    hdr = [l for l in ref if l.startswith(';') and '@launch' not in l and not l.startswith('; Override') and not l.startswith('; grid=')]
    s = '\n'.join(hdr) + '\n'
    for n, (a, nv, g, b, lds) in kernels: s += f'; @launch kernel={n}_kernel grid=({g},1,1) block=({b},1,1) lds={lds}\n'
    s += '.amdgcn_target "amdgcn-amd-amdhsa--gfx950"\n.text\n'
    for n, (a, nv, g, b, lds) in kernels:
        s += f'.globl {n}_kernel\n.p2align 8\n.type {n}_kernel,@function\n{n}_kernel:\n' + a.text()
    s += '.section .rodata,"a"\n'
    for n, (a, nv, g, b, lds) in kernels:
        nv = (nv + 3) // 4 * 4
        s += f'''.p2align 6
.amdhsa_kernel {n}_kernel
  .amdhsa_next_free_vgpr {nv}
  .amdhsa_next_free_sgpr 102
  .amdhsa_accum_offset {nv}
  .amdhsa_group_segment_fixed_size 0
  .amdhsa_kernarg_size 112
  .amdhsa_user_sgpr_count 2
  .amdhsa_user_sgpr_kernarg_segment_ptr 1
  .amdhsa_system_sgpr_workgroup_id_x 1
.end_amdhsa_kernel
'''
    open(out, 'w').write(s)
if __name__ == '__main__':
    import small
    ks = [('k1', small.k_ln(1))]
    try:
        import big
        ks += [('k2', big.k_attn())] + ([] if big.FUSE & 1 else [('k3', small.k_ln(3))])
        ks += ([] if big.FUSE & 4 else [('k4', big.k_ffn())]) + ([] if big.FUSE & 2 else [('k5', small.k_ln(5))])
    except ImportError: ks += [('k3', small.k_ln(3)), ('k5', small.k_ln(5))]
    for i, (n, k) in enumerate(ks):
        for ins in k[0].L:
            if ins.k == 'label': ins.txt = n + '_' + ins.txt; ins.op = n + '_' + ins.op
            elif ins.op.startswith('s_cbranch') or ins.op == 's_branch': ins.txt = ins.op + ' ' + n + '_' + ins.txt.split()[1]
    build(ks, sys.argv[1] if len(sys.argv) > 1 else f'cdna_kernels/{NAME}.s')
```

```python
import re
TRANS = ('v_exp_f32','v_log_f32','v_rcp_f32','v_rsq_f32','v_sqrt_f32','v_sin_f32','v_cos_f32')
def regs(tok):
    tok = tok.strip()
    m = re.fullmatch(r'(-|\|)?([vs])(\d+)\|?', tok)
    if m: return [(m.group(2), int(m.group(3)))]
    m = re.fullmatch(r'([vs])\[(\d+):(\d+)\]', tok)
    if m: return [(m.group(1), i) for i in range(int(m.group(2)), int(m.group(3))+1)]
    if tok == 'vcc': return [('s', 106), ('s', 107)]
    if tok == 'exec': return [('s', 126), ('s', 127)]
    if tok == 'm0': return [('s', 124)]
    return []
class I:
    def __init__(s, txt):
        s.txt = txt
        t = txt.split(';')[0].split(' op_sel')[0].strip()
        p = t.split(None, 1)
        s.op = p[0]
        ops = [o.strip() for o in p[1].split(',')] if len(p) > 1 else []
        if ops:
            last = ops[-1].split()
            s.mods = ' '.join(last[1:]); ops[-1] = last[0] if last else ''
        else: s.mods = ''
        op = s.op; s.w = []; s.r = []; s.srcc = []; s.ws = 1
        R = [regs(o) for o in ops]
        flat = lambda L: [x for l in L for x in l]
        if op.startswith('v_mfma'):
            s.k = 'mfma'; s.w = R[0]; s.r = R[1] + R[2]; s.srcc = R[3]
        elif op.startswith('v_'):
            s.k = 'trans' if op.replace('_e32','').replace('_e64','') in TRANS else 'valu'
            s.w = R[0]; s.r = flat(R[1:])
            if op.startswith('v_permlane') and 'swap' in op: s.w = R[0] + R[1]; s.r = R[0] + R[1]
            if op.startswith('v_cndmask') and len(ops) == 3: s.r += regs('vcc')
            if op in ('v_fmac_f32', 'v_mac_f32', 'v_dot2c_f32_bf16'): s.r += R[0]
            if op.startswith('v_add_co') or op.startswith('v_addc_co'): s.w = R[0] + R[1]; s.r = flat(R[2:])
        elif op.startswith('buffer_') or op.startswith('global_'):
            s.k = 'vmem'
            if 'lds' in s.mods.split(): s.r = flat(R) + regs('m0'); s.k2 = 'dma'
            elif 'load' in op: s.w = R[0]; s.r = flat(R[1:])
            else: s.r = flat(R); s.data = R[0] if op.startswith('buffer') else R[1]
        elif op.startswith('ds_'):
            s.k = 'ds'
            if 'read' in op or 'permute' in op or 'swizzle' in op: s.w = R[0]; s.r = flat(R[1:])
            else: s.r = flat(R)
        elif op == 's_nop': s.k = 'nop'; s.ws = int(ops[0]) + 1
        elif op.endswith(':'): s.k = 'label'; s.ws = 0
        elif op.startswith('s_'):
            s.k = 'salu'
            if op.startswith('s_cmp') or op.startswith('s_cbranch') or op in ('s_branch','s_waitcnt','s_barrier','s_endpgm','s_setprio','s_sleep'):
                s.r = flat(R)
            else:
                s.w = R[0]; s.r = flat(R[1:])
                if 'saveexec' in op: s.w = s.w + regs('exec')
        else: s.k = 'other'; s.ws = 0
def need(a, b):
    n = 0
    ov = lambda x, y: bool(set(x) & set(y))
    va = a.k in ('valu', 'trans')
    vb = b.k in ('valu', 'trans')
    aw_v = [x for x in a.w if x[0] == 'v']; aw_s = [x for x in a.w if x[0] == 's']
    if va:
        if b.k == 'mfma' and ov(aw_v, b.r + b.srcc): n = max(n, 2)
        if b.k == 'mfma' and ov(aw_s, regs('exec')): n = max(n, 4)
        if b.k == 'vmem' and ov(aw_s, b.r): n = max(n, 5)
        if vb and ov(aw_s, b.r): n = max(n, 2)
        if vb and ('readlane' in b.op or 'readfirstlane' in b.op) and ov(aw_v, b.r): n = max(n, 1)
        if a.op.startswith('v_dot') and ov(aw_v, b.r + b.w): n = max(n, 3)
        if a.k == 'trans' and b.k != 'trans' and ov(aw_v, b.r + b.srcc): n = max(n, 1)
        if vb and ('permlane' in b.op or 'row_' in b.mods or 'quad_perm' in b.mods) and ov(aw_v, b.r): n = max(n, 2)
    if a.k == 'mfma':
        if b.k == 'mfma':
            if ov(a.w, b.r): n = max(n, 12)
            if ov(a.w, b.srcc) and a.w != b.srcc: n = max(n, 10)
            if ov(a.w, b.w) and a.w != b.srcc: n = max(n, 10)
        elif b.k in ('valu', 'trans', 'vmem', 'ds'):
            if ov(a.w, b.r + b.w): n = max(n, 12)
            if ov(a.srcc, b.w): n = max(n, 7)
    if a.k == 'salu' and ov(a.w, regs('m0')) and getattr(b, 'k2', '') == 'dma': n = max(n, 1)
    if a.k == 'vmem' and len(getattr(a, 'data', [])) > 2 and vb and ov(a.data, b.w): n = max(n, 2)
    return n
class Asm:
    def __init__(s): s.L = []; s.vm = []; s.lg = []; s.uid = 0; s.lgdone = 0
    def __call__(s, txt, tag=None):
        for line in txt.strip().split('\n'):
            line = line.strip()
            if not line or line.startswith(';'): continue
            ins = I(line)
            gap = 0; reqd = 0
            for p in reversed(s.L[-24:]):
                if gap >= 12: break
                reqd = max(reqd, need(p, ins) - gap)
                gap += p.ws
            if reqd > 0: s.L.append(I('s_nop %d' % (reqd - 1)))
            s.L.append(ins)
            if ins.k == 'vmem': s.vm.append(tag)
            if ins.k == 'ds': s.lg.append(tag)
            if ins.k == 'label': s.lgdone = 0
            m = re.search(r'lgkmcnt\((\d+)\)', line)
            if m: s.lgdone = max(s.lgdone, len(s.lg) - int(m.group(1)))
    def stamp(s):
        import os
        if not os.environ.get('PROF'): return
        s.ns = getattr(s, 'ns', 0) + 1
        s('%s s[%d:%d]' % ('s_memrealtime' if os.environ['PROF'] == 'rt' else 's_memtime', 48+2*s.ns, 49+2*s.ns))
        if s.ns == 1: s('s_memrealtime s[100:101]')
    def dump(s, base, srd):
        import os
        if not os.environ.get('PROF'): return
        s.stamp()
        s('s_memrealtime s[82:83]\n s_waitcnt vmcnt(0) lgkmcnt(0)\n s_memtime s[80:81]')
        s('s_waitcnt lgkmcnt(0)\n s_lshl_b32 s48, s2, 3\n s_add_u32 s48, s48, s24\n s_lshl_b32 s48, s48, 7\n s_add_u32 s48, s48, %d\n v_mov_b32 v0, 0' % base)
        for i, r in [(i, 48+2*i) for i in range(1, s.ns + 1)] + [(23, 80), (24, 82), (25, 100)]:
            s('v_mov_b32 v1, s%d\n buffer_store_dword v1, v0, s[%d:%d], s48 offen offset:%d' % (r, srd, srd+3, 4*i))
    def label(s, base='L'):
        s.uid += 1; return '%s_%d' % (base, s.uid)
    def cnt(s, q, tag):
        idx = max(i for i, t in enumerate(q) if t == tag)
        return len(q) - 1 - idx
    def wvm(s, tag):
        n = s.cnt(s.vm, tag); assert n <= 63; s('s_waitcnt vmcnt(%d)' % n)
    def wlg(s, tag):
        n = min(s.cnt(s.lg, tag), 15)
        if len(s.lg) - s.cnt(s.lg, tag) <= s.lgdone: return
        s('s_waitcnt lgkmcnt(%d)' % n)
    def check_branches(s):
        lab = {i.op[:-1]: k for k, i in enumerate(s.L) if i.k == 'label'}
        for k, i in enumerate(s.L):
            if i.op.startswith('s_cbranch') or i.op == 's_branch':
                tgt = lab[i.txt.split()[1]]
                pre = s.L[max(0, k-24):k+1]; post = s.L[tgt:tgt+24]
                g2 = 0
                for b in post:
                    gap = g2
                    for a in reversed(pre):
                        if need(a, b) > gap: raise Exception('branch hazard: %s -> %s via %s' % (a.txt, b.txt, i.txt))
                        gap += a.ws
                    g2 += b.ws
    def text(s):
        s.check_branches()
        return '\n'.join(('' if i.k == 'label' else '  ') + i.txt for i in s.L) + '\n'
def vr(a, n): return 'v[%d:%d]' % (a, a+n-1) if n > 1 else 'v%d' % a
def sr(a, n): return 's[%d:%d]' % (a, a+n-1) if n > 1 else 's%d' % a
```

```python
from asm import *
from small import *
import os
STA, STB = os.environ.get('STA', 'sc1'), os.environ.get('STB', 'sc1')
MF = 'v_mfma_f32_32x32x16_bf16'
def mf(d, A, B, c=None): return f'{MF} {vr(d,16)}, {vr(A,4)}, {vr(B,4)}, ' + (vr(d,16) if c is None else c)
_p = [0]
def mf16(d, A, B, c=None):
    _p[0] ^= 1
    o = 8 * _p[0]
    M = 'v_mfma_f32_16x16x32_bf16'
    return '\n'.join(f'{M} {vr(d+o+4*i,4)}, {vr(A,4)}, {vr(B,4)}, {vr(d+o+4*i,4)}' for i in range(2))
def weave(a, mfmas, fill):
    n = len(mfmas); k = 0
    for i, m in enumerate(mfmas):
        m()
        e = (len(fill) * (i + 1) + n - 1) // n
        while k < e: a(*fill[k]); k += 1
def merge(*ls):
    it = sorted(((j + 0.5) / len(l), i, j) for i, l in enumerate(ls) for j in range(len(l)))
    return [ls[i][j] for _, i, j in it]
def dma(vo, s, soff): return f'buffer_load_dwordx4 v{vo}, s[{s}:{s+3}], {soff} offen lds'
def lanebits(a):
    a('''v_and_b32 v1, 63, v0
    v_lshrrev_b32 v8, 6, v0
    v_readfirstlane_b32 s24, v8
    v_lshrrev_b32 v8, 5, v1
    v_bfe_u32 v9, v1, 2, 2
    v_bfe_u32 v10, v1, 4, 1
    v_and_b32 v11, 3, v1
    v_lshlrev_b32 v12, 1, v11
    v_lshrrev_b32 v13, 1, v11
    v_or_b32 v12, v12, v13
    v_and_b32 v12, 3, v12
    v_bfe_u32 v13, v1, 3, 2
    v_mul_u32_u24 v2, 9216, v13
    v_lshl_add_u32 v2, v8, 7, v2
    v_and_b32 v13, 7, v1
    v_lshl_add_u32 v2, v13, 4, v2''')
    if os.environ.get('PRIO'): a('s_cmp_lt_u32 s24, 4\n s_cbranch_scc1 prio_d\n s_setprio 1\n prio_d:')
def gemm_phase(a, nst, per, reads, mfma, ring, dist, pre_stage, extra):
    N = nst * per
    def rd(i):
        st, j = divmod(i, per)
        if j == 0: pre_stage(st)
        for t in reads(st, j, ring[i % len(ring)]): a(t, ('f', i))
    for i in range(dist): rd(i)
    for i in range(N):
        st, j = divmod(i, per)
        a.wlg(('f', i))
        a(mfma(st, j, ring[i % len(ring)]))
        if i + dist < N: rd(i + dist)
        for t in extra(st, j): a(*t)
SL = lambda i: 32768 + 32768 * ((i - 9) % 4)
QS = lambda i: 16384 + 49152 * (i % 3)
def k_attn():
    a = Asm(); a.stamp(); guard(a, 256)
    srd(a, 4, 24, 576*8192); srd(a, 8, 8, 16*524288); srd(a, 12, 16, 16*524288); srd(a, 16, 32, 4096*1152); srd(a, 20, 104, WS_SZ)
    def early():
        lanebits(a)
        a(f'''s_and_b32 s25, s2, 7
        s_bfe_u32 s26, s2, 0x10003
        s_lshl_b32 s26, s26, 3
        s_add_u32 s25, s25, s26
        s_lshr_b32 s26, s2, 4
        s_and_b32 s28, s24, 3
        s_lshr_b32 s29, s24, 2
        s_lshl_b32 s30, s24, 10
        s_lshl_b32 s31, s26, 2
        s_add_u32 s31, s31, s28
        s_mul_i32 s31, s31, 36864
        s_add_u32 s32, s31, {WS_H}
        s_mul_i32 s33, s25, {PSZ}
        s_add_u32 s33, s33, s31
        s_lshl_b32 s34, s29, 9
        s_add_u32 s33, s33, s34
        s_add_u32 s33, s33, {WS_PA}
        s_lshl_b32 s34, s25, 9
        s_lshl_b32 s35, s25, 19
        s_add_u32 s35, s35, {1536*256}
        s_mul_i32 s36, s25, {256*1152}
        s_mul_i32 s32, s26, {16*9216}
        s_lshl_b32 s37, s24, 7
        s_add_u32 s32, s32, s37
        s_add_u32 s32, s32, {WS_H}
        s_lshl_b32 s47, s24, 6
        s_add_u32 s47, s47, 0x4000
        v_lshrrev_b32 v13, 3, v1
        v_mul_u32_u24 v253, 9216, v13
        v_and_b32 v13, 7, v1
        v_lshl_add_u32 v253, v13, 4, v253
        v_and_b32 v13, 31, v1
        v_lshlrev_b32 v252, 12, v8
        v_lshl_add_u32 v252, v13, 4, v252
        s_lshl_b32 s37, s24, 9
        s_add_u32 s37, s37, {QS(0)+32768}
        v_add_u32 v252, s37, v252
        ; vDq
        s_lshl_b32 s37, s24, 1
        v_add_u32 v13, s37, v8
        v_and_b32 v14, 3, v13
        v_bfe_u32 v15, v1, 2, 3
        v_xor_b32 v14, v14, v15
        v_lshlrev_b32 v3, 13, v13
        v_lshl_add_u32 v3, v14, 6, v3
        v_lshl_add_u32 v3, v11, 4, v3
        s_waitcnt lgkmcnt(0)''')
    def late():
        a(f'''
        s_lshl_b32 s37, s24, 2
        v_lshrrev_b32 v13, 4, v1
        v_add_u32 v14, s37, v13
        v_and_b32 v15, 15, v1
        v_xor_b32 v7, v15, v14
        v_and_b32 v7, 15, v7
        v_lshlrev_b32 v4, 8, v14
        v_lshl_add_u32 v5, v15, 4, v4
        v_lshl_add_u32 v4, v7, 4, v4
        v_lshlrev_b32 v13, 6, v13
        v_xor_b32 v5, v5, v13
        ; vDo
        s_lshl_b32 s37, s24, 3
        v_lshrrev_b32 v13, 3, v1
        v_add_u32 v13, s37, v13
        v_mul_u32_u24 v6, 1152, v13
        v_bfe_u32 v13, v1, 2, 1
        v_xor_b32 v13, v13, v10
        v_lshl_add_u32 v6, v13, 6, v6
        v_lshl_add_u32 v6, v11, 4, v6
        ; aQ[0..3] v16..19
        v_lshl_add_u32 v13, v8, 3, v9
        v_lshlrev_b32 v16, 9, v13
        s_lshl_b32 s37, s29, 2
        v_xor_b32 v13, s37, v9
        v_lshl_add_u32 v16, v13, 6, v16
        v_lshl_add_u32 v16, v10, 5, v16
        v_lshl_add_u32 v16, v12, 3, v16
        v_add_u32 v16, {QS(0)}, v16
        v_xor_b32 v17, 64, v16
        v_xor_b32 v18, 0x80, v16
        v_xor_b32 v19, 0xc0, v16
        ; aV[0..3] v20..23
        v_lshl_add_u32 v13, v8, 2, v9
        v_lshlrev_b32 v20, 8, v13
        v_lshl_add_u32 v20, v9, 6, v20
        v_lshl_add_u32 v20, v10, 5, v20
        v_lshl_add_u32 v20, v11, 3, v20
        v_add_u32 v20, {SL(8)}, v20
        v_xor_b32 v21, 64, v20
        v_xor_b32 v22, 0x80, v20
        v_xor_b32 v23, 0xc0, v20
        ; aK[0..7] v24..31
        v_and_b32 v13, 31, v1
        v_lshlrev_b32 v24, 8, v13
        v_and_b32 v13, 15, v1
        v_xor_b32 v13, v13, v8
        v_lshl_add_u32 v24, v13, 4, v24''')
        for s in range(1, 8): a(f'v_xor_b32 v{24+s}, {s<<5}, v24')
        a(f'''v_lshl_add_u32 v13, v8, 2, v9
        v_lshlrev_b32 v15, 7, v13
        v_lshrrev_b32 v13, 1, v9
        v_xor_b32 v13, s29, v13
        v_lshl_add_u32 v15, v13, 6, v15
        v_lshl_add_u32 v15, v10, 5, v15
        v_lshl_add_u32 v15, v12, 3, v15
        v_lshlrev_b32 v14, 4, v1
        s_lshl_b32 s37, s28, 12
        s_add_u32 s37, s37, {QS(0)+32768}
        v_add_u32 v13, s37, v14''')
    def prefetch():
        a(f'''v_lshrrev_b32 v252, 2, v0
        v_lshlrev_b32 v252, 13, v252
        v_lshl_add_u32 v252, v11, 7, v252
        v_lshlrev_b32 v253, 7, v0
        s_mul_i32 s37, s26, {36*8192}
        s_add_u32 s37, s37, s34
        s_mul_i32 s38, s26, {16*1152}
        s_add_u32 s38, s38, s36
        v_cmp_gt_u32 vcc, 0x90, v0
        s_and_saveexec_b64 s[40:41], vcc
        s_cbranch_execz pf_kv
        buffer_load_dword v254, v252, s[4:7], s37 offen
        buffer_load_dword v254, v253, s[16:19], s38 offen
        s_branch pf_done
        pf_kv:
        s_mov_b64 exec, s[40:41]
        s_lshl_b32 s37, s26, 13
        s_add_u32 s37, s37, s35
        v_lshlrev_b32 v253, 7, v1
        s_cmp_eq_u32 s24, 3
        s_cbranch_scc0 pf_done
        buffer_load_dword v254, v253, s[12:15], s37 offen
        buffer_load_dword v254, v253, s[8:11], s37 offen
        pf_done:
        s_mov_b64 exec, s[40:41]''')
        del a.vm[-4:]
    HB, AQ, QP = 112, 48, 224
    def piece(vo, sd, m0, soff_reg, soff_add, tag):
        return [(f's_add_u32 m0, s30, {m0}\n s_add_u32 s38, {soff_reg}, {soff_add}\n ' + dma(vo, sd, 's38'), tag)]
    XR, XT, XS = 136, 160, 168
    xl = lambda j, tag: [(f's_add_u32 s38, s32, {j*1024+u*8*9216}\n buffer_load_dwordx4 {vr(XR+8*(j%3)+4*u,4)}, v253, s[20:23], s38 offen', tag) for u in range(2)]
    cl = lambda j, sb: f's_add_u32 s46, s47, {j*512}\n s_load_dwordx16 s[{sb}:{sb+15}], s[20:21], s46'
    def modulate(j):
        sb = 64 if j & 1 else 84
        L = [cl(j + 1, 84 if j & 1 else 64)] if 1 <= j < 8 else []
        L += [f'v_mov_b32 v{XS+i}, s{sb+8+i}' for i in range(8)]
        if j: L.append(f'v_add_u32 v252, {(QS(j)-QS(j-1)) & 0xffffffff}, v252')
        for u in range(2):
            X = XR + 8*(j % 3) + 4*u
            for i in range(4):
                L += [f'v_lshlrev_b32 v{XT+2*i}, 16, v{X+i}', f'v_and_b32 v{XT+2*i+1}, 0xffff0000, v{X+i}']
                L += [f'v_fma_f32 v{XT+2*i+k}, v{XT+2*i+k}, s{sb+2*i+k}, v{XS+2*i+k}' for k in range(2)]
                L += [f'v_cvt_pk_bf16_f32 v{X+i}, v{XT+2*i}, v{XT+2*i+1}']
            L += [f'ds_write_b128 v252, {vr(X,4)} offset:{8192*u}']
        return [(t, None) for t in L]
    def loads(idx):
        L = []
        if idx < 9:
            if idx < 8: L += xl(idx + 1, ('d', idx))
            for q in range(4): L += piece(3, 4, QS(idx) + q*8192, 's34', idx*524288 + q*131072, ('d', idx))
        elif idx < 17:
            t = idx - 9
            for q in range(2): L += piece(5, 12, SL(idx) + q*8192, 's35', t*16384 + q*8192, ('d', idx))
            for q in range(2): L += piece(4, 8, SL(idx) + 16384 + q*8192, 's35', (t+1)*16384 + q*8192, ('d', idx))
        else:
            for q in range(4): L += piece(6, 16, SL(idx) + q*8192, 's36', q*64*1152 + (idx-17)*128, ('d', idx))
        return L
    early()
    for t in xl(0, 'x0'): a(*t)
    a(cl(0, 84)); a(cl(1, 64))
    for t in loads(0): a(*t)
    late()
    for t in loads(1): a(*t)
    a.wvm('x0'); a('s_waitcnt lgkmcnt(0)')
    for t in modulate(0): a(*t)
    mq = []
    pend = []
    for q in range(2): pend += piece(4, 8, q*8192, 's35', q*8192, 'k0')
    def pre_q(st):
        while mq: a(*mq.pop(0))
        a.wvm(('d', st)); a('s_waitcnt lgkmcnt(0)\n s_barrier')
        if st in (0, 1, 4, 8): a.stamp()
        if st == 0 and os.environ.get('L2PF'): prefetch()
        if st > 0:
            for r in (13, 16, 17, 18, 19): a(f'v_add_u32 v{r}, {(QS(st)-QS(st-1)) & 0xffffffff}, v{r}')
        pend.extend(loads(st + 2))
        assert not mq
        if st < 8: mq.extend(modulate(st + 1))
    def ex(st, j): return [mq.pop(0) for _ in range(min(4, len(mq)))] + ([pend.pop(0)] if pend and j % 2 else [])
    gemm_phase(a, 9, 16,
        lambda st, j, b: [f'ds_read_b64_tr_b16 {vr(b+2*t,2)}, v{16+(j&3)} offset:{(16*(j>>2)+4*t)*512}' for t in range(2)]
           + ([f'ds_read_b128 {vr(HB+4*(j>>2),4)}, v13 offset:{1024*(j>>2)}'] if j % 4 == 0 else []),
        lambda st, j, b: mf(AQ+16*(j&3), b, HB+4*(j>>2), '0' if st == 0 and j < 4 else None),
        [32, 36, 40, 44, 128, 132], 4, pre_q, ex)
    assert not pend
    a('s_barrier')
    for t in loads(11): a(*t)
    O, S0, S1, NM, P, KF = 48, 112, 128, 144, 160, 168
    VF = [32, 36, 40, 44, 200, 204, 208, 212]
    kread = lambda base: [(f'ds_read_b128 {vr(KF+4*s,4)}, v{24+s} offset:{base}', ('k', s)) for s in range(8)]
    a.stamp()
    for t in kread(0): a(*t)
    a('s_mov_b32 s38, 0x3e0293ee')
    for i in range(0, 64, 2):
        a(f'v_mul_f32 v{AQ+i}, s38, v{AQ+i}\n v_mul_f32 v{AQ+i+1}, s38, v{AQ+i+1}\n v_cvt_pk_bf16_f32 v{QP+i//2}, v{AQ+i}, v{AQ+i+1}')
    def qk(Sn, c0):
        def f(s):
            def g(): a.wlg(('k', s | 3)); a(mf(Sn, KF+4*s, QP+4*s, c0 if s == 0 else None))
            return g
        return [f(s) for s in range(8)]
    weave(a, qk(S0, '0'), [(f'v_mov_b32 v{O+i}, 0', None) for i in range(64)])
    for t in kread(8192): a(*t)
    def vmax(Sn):
        L = [(f'v_max3_f32 v8, v{Sn}, v{Sn+1}, v{Sn+2}', None), (f'v_max3_f32 v9, v{Sn+3}, v{Sn+4}, v{Sn+5}', None)]
        for i in range(6, 14, 4): L += [(f'v_max3_f32 v8, v8, v{Sn+i}, v{Sn+i+1}', None), (f'v_max3_f32 v9, v9, v{Sn+i+2}, v{Sn+i+3}', None)]
        return L + [(f'v_max3_f32 v8, v8, v{Sn+14}, v{Sn+15}', None), ('v_max_f32 v8, v8, v9', None)]
    a('v_mov_b32 v7, 0\n s_mov_b32 s27, 0\n s_mov_b32 s39, 0x41f00000')
    for r in range(24, 32): a(f'v_add_u32 v{r}, {SL(8)+16384}, v{r}')
    for t in vmax(S0): a(*t)
    a('v_mov_b32 v9, v8\n v_permlane32_swap_b32 v8, v9\n v_max_f32 v8, v8, v9')
    for i in range(16): a(f'v_sub_f32 v{S0+i}, v{S0+i}, v8\n v_sub_f32 v{NM+i}, 0, v8')
    a(f"""s_mov_b32 s40, {SL(8)}
    s_add_u32 s42, s35, {3*16384}
    s_add_u32 s43, s35, {4*16384}
    s_movk_i32 s46, 8192
    s_movk_i32 s47, 16384
    s_lshl_b32 s37, s2, 3
    s_add_u32 s37, s37, s24
    s_movk_i32 s38, 48
    s_cmp_ge_u32 s37, 683
    s_cselect_b32 s38, 56, s38
    s_cselect_b32 s44, 683, 0
    s_cmp_ge_u32 s37, 1366
    s_cselect_b32 s38, 64, s38
    s_cselect_b32 s44, 1366, s44
    s_sub_u32 s37, s37, s44
    s_mul_i32 s37, s37, {61*128}
    s_load_dwordx2 s[4:5], s[0:1], s38
    s_mov_b32 s6, {576*9216}
    v_lshlrev_b32 v216, 7, v1
    s_mul_i32 s38, s26, {16*1152}
    s_add_u32 s38, s38, s36
    s_mul_i32 s44, s24, {18*128}
    s_add_u32 s38, s38, s44
    s_mov_b64 exec, 0x3ffff
    buffer_load_dword v217, v216, s[16:19], s38 offen
    s_mov_b64 exec, -1
    v_add_u32 v216, s37, v216""")
    rare = []
    COST = lambda t: 8 if t.startswith('v_exp') else (4 if t.startswith('v_') else (24 if 'buffer' in t else 0))
    def block(Sc, Sn, kb, last, nok, early, top=None):
        N = lambda x: (x, None)
        E = [N(f'v_exp_f32 v{Sc+i}, v{Sc+i}') for i in range(16)]
        C = [N(f'v_cvt_pk_bf16_f32 v{P+i}, v{Sc+2*i}, v{Sc+2*i+1}') for i in range(8)]
        A = [N(f'v_add_f32 v10, v{Sc}, v{Sc+1}')] + [N(f'v_add_f32 v{10 if i&1 else 7}, v{10 if i&1 else 7}, v{Sc+i}') for i in range(2, 16)] + [N('v_add_f32 v7, v7, v10')]
        seq = E[0:3]
        for i in range(8):
            seq += [C[i]] + E[2*i+3:2*i+5]
            if i >= 2: seq += A[i-2:i-1]
        seq = seq[:7] + merge(seq[7:], early)
        tail = A[6:] + ([] if last else vmax(Sn))
        gaps = [[] for _ in range(16)]
        tot = sum(COST(t[0]) for t in seq); c = 0
        for t in seq:
            gaps[min(10, int(c * 11 / tot))].append(t); c += COST(t[0])
        for k, t in enumerate(tail): gaps[11 + k * 5 // len(tail)].append(t)
        vrd = [(f'ds_read_b64_tr_b16 {vr(VF[4*ks+db]+2*t,2)}, v{20+db} offset:{kb*8192+(16*ks+8*t)*256}', ('v', ks, db)) for ks in range(2) for db in range(4) for t in range(2)]
        for k, t in enumerate(vrd): gaps[(2 + k * 8 // 16) if top else k * 10 // 16].insert(1, t)
        if not nok:
            for k, t in enumerate(kread(kb * 8192)): gaps[8 + k].insert(1, t)
        q = qk(Sn, vr(NM, 16))
        for g in range(16):
            if g < 8:
                if not last: q[g]()
            else:
                ks, db = divmod(g - 8, 4)
                a.wlg(('v', ks, db | 1)); a(mf(O+16*db, VF[4*ks+db], P+4*ks))
            for t in gaps[g]: a(*t)
            if top and g == 1: top()
            if last and g == 10: a('s_waitcnt lgkmcnt(0)\n s_barrier')
        if not last:
            l1, l2 = a.label('rare'), a.label('back')
            a(f'v_cmp_lt_f32 vcc, s39, v8\n s_cbranch_vccnz {l1}\n {l2}:')
            rare.append((l1, l2, Sn))
    def dmas(h, tag):
        so = f's{42+h}'
        return [(f's_add_u32 m0, s41, {h*16384}\n ' + dma(5-h, 12-4*h, so), tag),
                (f's_add_u32 m0, s41, {h*16384+8192}\n s_add_u32 s38, {so}, s46\n s_add_u32 {so}, {so}, s47\n ' + dma(5-h, 12-4*h, 's38'), tag)]
    def iteration(last):
      def top():
        a("""s_add_u32 s44, s40, 32768
        s_cmp_eq_u32 s44, 163840
        s_cselect_b32 s44, 32768, s44
        s_sub_u32 s45, s44, s40
        s_add_u32 s41, s40, s30
        s_mov_b32 s40, s44""")
        for r in range(20, 24): a(f'v_add_u32 v{r}, s45, v{r}')
        if not last: a('s_cmp_ge_u32 s27, 4\n s_cbranch_scc1 att_sw\n att_swb:')
        a('s_waitcnt vmcnt(9) lgkmcnt(0)\n s_barrier')
      tag = ('d', 19) if last else None
      pf = [] if last else [('s_mov_b64 exec, 0x1ff\n buffer_load_dword v217, v216, s[4:7], 0 offen\n s_mov_b64 exec, -1\n v_add_u32 v216, 0x480, v216', None)]
      block(S0, S1, 0, False, last, merge([(f'v_add_u32 v{r}, s45, v{r}', None) for r in range(24, 32)], dmas(0, tag)), top)
      block(S1, S0, 1, last, last, dmas(1, tag) + pf)
    a.stamp()
    a('att_loop:')
    iteration(False)
    a('s_add_u32 s27, s27, 1\n s_cmp_lt_u32 s27, 7\n s_cbranch_scc1 att_loop')
    a.vm += [('d', 17)] * 4 + [('d', 18)] * 4
    a.stamp()
    iteration(True)
    a.stamp()
    OW, OP, C0, PK = 112, 144, 176, 208
    a('v_mov_b32 v9, v7\n v_permlane32_swap_b32 v7, v9\n v_add_f32 v7, v7, v9\n v_rcp_f32 v7, v7')
    a(f'''s_lshl_b32 s38, s28, 13
    s_lshl_b32 s37, s29, 17
    s_add_u32 s38, s38, s37
    v_add_u32 v13, s38, v14
    s_xor_b32 s38, s38, 131072
    v_add_u32 v14, s38, v14
    s_lshl_b32 s38, s29, 14
    s_add_u32 s38, s38, {SL(17)}
    v_add_u32 v16, s38, v15
    v_xor_b32 v17, 0x4000, v16''')
    for i in range(0, 64, 2):
        a(f'v_mul_f32 v{O+i}, v7, v{O+i}\n v_mul_f32 v{O+i+1}, v7, v{O+i+1}\n v_cvt_pk_bf16_f32 v{OW+i//2}, v{O+i}, v{O+i+1}')
        if i % 8 == 6: a(f'ds_write_b128 v13, {vr(OW+i//2-3,4)} offset:{(i//8)*1024}')
    def pre_o(st):
        a.wvm(('d', 17+st)); a('s_waitcnt lgkmcnt(0)\n s_barrier')
        if st in (0, 1, 4, 8): a.stamp()
        if st > 0:
            for r in (16, 17): a(f'v_add_u32 v{r}, {(SL(17+st)-SL(16+st)) & 0xffffffff}, v{r}')
        if st == 1: pend.extend(loads(20))
        if 1 <= st <= 5: pend.extend(loads(20 + st))
    def outp(st):
        C = C0 + 16*(st & 1); K = PK + 8*(st & 1)
        L = [(f'v_cvt_pk_bf16_f32 v{K+i}, v{C+2*i}, v{C+2*i+1}', None) for i in range(8)]
        L.insert(4, (f's_add_u32 s46, s33, {st*1024}\n buffer_store_dwordx4 {vr(K,4)}, v2, s[20:23], s46 offen ' + STA, 'st'))
        return L + [(f'buffer_store_dwordx4 {vr(K+4,4)}, v2, s[20:23], s46 offen offset:256 ' + STA, 'st')]
    def ex_o(st, j):
        L = []
        if st == 0 and j == 0: L += [(f'ds_read_b128 {vr(OP+4*i,4)}, v14 offset:{1024*i}', 'op') for i in range(8)]
        if st > 0 and 3 <= j < 8: L += outp(st-1)[2*(j-3):2*(j-3)+2]
        if pend and j % 2 == 0 and (j >= 8 or j < 3 or st < 3): L.append(pend.pop(0))
        return L
    gemm_phase(a, 9, 16,
        lambda st, j, b: [f'ds_read_b64_tr_b16 {vr(b+2*t,2)}, v{16+(j>>3)} offset:{(16*(j&7)+8*t)*128}' for t in range(2)],
        lambda st, j, b: mf(C0+16*(st&1), b, (OW if j < 8 else OP)+4*(j&7), '0' if j == 0 else None),
        [32, 36, 40, 44, 48, 52], 4, pre_o, ex_o)
    assert not pend
    for t in outp(8): a(*t)
    a.dump(0x7000000, 20)
    a('s_endpgm')
    a(f'''att_sw:
    s_cmp_eq_u32 s27, 4
    s_cselect_b32 s38, {8*16384}, 0
    s_sub_u32 s43, s43, s38
    s_cmp_eq_u32 s27, 5
    s_cbranch_scc0 att_swb
    v_mov_b32 v4, v6
    v_mov_b32 v5, v6
    s_mov_b64 s[8:9], s[16:17]
    s_mov_b64 s[10:11], s[18:19]
    s_mov_b64 s[12:13], s[16:17]
    s_mov_b64 s[14:15], s[18:19]
    s_mov_b32 s42, s36
    s_add_u32 s43, s36, {128*1152}
    s_mov_b32 s46, {64*1152}
    s_movk_i32 s47, 128
    s_branch att_swb''')
    for l1, l2, Sn in rare:
        a(f'''{l1}:
        s_nop 11
        v_mov_b32 v9, v8
        v_permlane32_swap_b32 v8, v9
        v_max3_f32 v8, v8, v9, 0
        v_sub_f32 v9, 0, v8
        v_exp_f32 v9, v9''')
        for i in range(16): a(f'v_sub_f32 v{Sn+i}, v{Sn+i}, v8\n v_sub_f32 v{NM+i}, v{NM+i}, v8')
        for i in range(64): a(f'v_mul_f32 v{O+i}, v9, v{O+i}')
        a(f'v_mul_f32 v7, v9, v7\n s_nop 1\n s_branch {l2}')
    return a, 256, 256, 512, 163840
SF = lambda i: 36864 * (i % 4)
def k_ffn():
    global mf
    if os.environ.get('FAKE16'): mf = mf16
    a = Asm(); a.stamp(); guard(a, 256)
    if os.environ.get('NOLOC'): a('s_lshr_b32 s25, s2, 4\n s_and_b32 s26, s2, 15\n s_lshl_b32 s26, s26, 4\n s_or_b32 s2, s25, s26')
    srd(a, 4, 48, 576*9216); srd(a, 12, 48, 576*9216); srd(a, 8, 56, 576*9216); srd(a, 16, 64, 4608*1152); srd(a, 20, 104, WS_SZ)
    lanebits(a)
    a(f'''s_and_b32 s25, s2, 7
    s_bfe_u32 s26, s2, 0x10003
    s_lshl_b32 s26, s26, 3
    s_add_u32 s25, s25, s26
    s_lshr_b32 s26, s2, 4
    s_and_b32 s28, s24, 3
    s_lshr_b32 s29, s24, 2
    s_mul_i32 s30, s24, 4608
    s_lshl_b32 s31, s26, 2
    s_add_u32 s31, s31, s28
    s_mul_i32 s31, s31, 36864
    s_add_u32 s32, s31, {WS_H2}
    s_mul_i32 s33, s25, {PSZ}
    s_add_u32 s33, s33, s31
    s_lshl_b32 s34, s29, 9
    s_add_u32 s33, s33, s34
    s_add_u32 s33, s33, {WS_PB}
    s_mul_i32 s34, s25, 576
    s_mul_i32 s35, s28, {8*9216}
    s_add_u32 s34, s34, s35
    s_mul_i32 s36, s25, {288*1152}
    s_mul_i32 s35, s24, {36*1152}
    s_add_u32 s36, s36, s35
    s_lshl_b32 s37, s29, 1''')
    for q in range(5):
        a(f'''v_add_u32 v13, {64*q}, v1
        v_mul_u32_u24 v14, 1821, v13
        v_lshrrev_b32 v14, 16, v14
        v_mul_u32_u24 v15, 36, v14
        v_sub_u32 v13, v13, v15
        v_xor_b32 v13, s37, v13
        v_mul_u32_u24 v{3+q}, 9216, v14
        v_lshl_add_u32 v{3+q}, v13, 4, v{3+q}''')
        if 0 < q < 4: a(f'v_subrev_u32 v{3+q}, {1024*q}, v{3+q}')
    a(f'''; vDd -> v19
    v_lshrrev_b32 v13, 3, v1
    v_mul_u32_u24 v19, 1152, v13
    v_bfe_u32 v13, v1, 2, 1
    v_xor_b32 v13, v13, v10
    v_lshl_add_u32 v19, v13, 6, v19
    v_lshl_add_u32 v19, v11, 4, v19
    ; aG -> v16
    v_lshl_add_u32 v13, v8, 3, v9
    v_mul_u32_u24 v16, 576, v13
    v_lshl_add_u32 v16, v11, 3, v16
    v_mul_u32_u24 v13, 18432, v10
    v_add_u32 v16, v16, v13
    v_xor_b32 v13, s29, v10
    v_lshl_add_u32 v16, v13, 5, v16
    v_lshl_add_u32 v13, v8, 2, v9
    v_lshlrev_b32 v17, 7, v13
    v_lshrrev_b32 v13, 1, v9
    v_xor_b32 v13, s29, v13
    v_lshl_add_u32 v17, v13, 6, v17
    v_lshl_add_u32 v17, v10, 5, v17
    v_lshl_add_u32 v17, v12, 3, v17
    s_lshl_b32 s38, s29, 11
    v_add_u32 v17, s38, v17
    v_xor_b32 v18, 0x800, v17
    v_add_u32 v17, {SF(18)}, v17
    v_add_u32 v18, {SF(18)}, v18
    v_lshlrev_b32 v13, 4, v1
    s_mul_i32 s38, s24, 9216
    v_add_u32 v20, s38, v13
    s_xor_b32 s38, s24, 4
    s_mul_i32 s38, s38, 9216
    v_add_u32 v21, s38, v13
    v_mov_b32 v22, 0xc0135761
    s_mov_b32 s39, 0xbdd2d3e8
    s_waitcnt lgkmcnt(0)
    s_cmp_eq_u32 s29, 0
    s_cselect_b32 s4, s4, s8
    s_cselect_b32 s5, s5, s9''')
    ACC, HR = 112, 64
    half = lambda t: f's_mov_b32 exec_hi, 0\n {t}\n s_mov_b32 exec_hi, -1'
    def loads(idx):
        tg = ('d', idx)
        if idx < 18:
            L = [(f's_add_u32 m0, s30, {SF(idx)}\n s_add_u32 s38, s34, {idx*32*9216}\n ' + dma(3, 4, 's38'), tg)]
            L += [(dma(3+q, 4, 's38').replace(' lds', f' offset:{1024*q} lds'), tg) for q in range(1, 4)]
            L += [(f's_add_u32 m0, m0, 4096\n ' + half(dma(7, 4, 's38')), tg)]
            L += [(f's_add_u32 s40, s32, {idx*512}\n buffer_load_dwordx4 {vr(HR+8*(idx%4),4)}, v2, s[20:23], s40 offen', tg)]
            L += [(f'buffer_load_dwordx4 {vr(HR+8*(idx%4)+4,4)}, v2, s[20:23], s40 offen offset:256', tg)]
            return L
        L = []
        for q in range(5):
            d = dma(19, 16, 's38')
            L += [(f's_add_u32 m0, s30, {SF(idx)+1024*q}\n s_add_u32 s38, s36, {q*8*1152+(idx-18)*128}\n ' + (half(d) if q == 4 else d), tg)]
        return L
    for idx in range(3):
        for t in loads(idx): a(*t)
    def prefetch():
        a(f'''v_mul_u32_u24 v28, 13108, v0
        v_lshrrev_b32 v28, 16, v28
        v_mul_u32_u24 v29, 5, v28
        v_sub_u32 v29, v0, v29
        v_mul_u32_u24 v28, 9216, v28
        v_lshl_add_u32 v28, v29, 7, v28
        s_mul_i32 s37, s26, {36*9216}
        s_mul_i32 s38, s25, 576
        s_add_u32 s37, s37, s38
        s_and_b32 s37, s37, 0xffffff80
        v_cmp_gt_u32 vcc, 0xb4, v0
        s_and_saveexec_b64 s[40:41], vcc
        s_cbranch_execz pf_d
        buffer_load_dword v31, v28, s[12:15], s37 offen
        buffer_load_dword v31, v28, s[8:11], s37 offen
        s_branch pf_done
        pf_d:
        s_mov_b64 exec, s[40:41]
        v_subrev_u32 v29, 192, v0
        v_min_u32 v29, 161, v29
        v_lshlrev_b32 v29, 7, v29
        s_mul_i32 s37, s25, {288*1152}
        s_mul_i32 s38, s26, {18*1152}
        s_add_u32 s37, s37, s38
        s_cmp_lt_u32 s24, 6
        s_cbranch_scc0 pf_done
        buffer_load_dword v31, v29, s[16:19], s37 offen
        pf_done:
        s_mov_b64 exec, s[40:41]''')
        del a.vm[-3:]
    pend = []
    def pre_g(st):
        a.wvm(('d', st)); a('s_waitcnt lgkmcnt(0)\n s_barrier')
        if st in (0, 1, 4, 10, 17): a.stamp()
        if st == 0 and os.environ.get('L2PF'): prefetch()
        if st > 0: a(f'v_add_u32 v16, {(SF(st)-SF(st-1)) & 0xffffffff}, v16')
        if st + 3 < 20: pend.extend(loads(st + 3))
    HW, HP, C0, PK = 64, 112, 160, 192
    def geglu(i):
        A = ACC + 16*i
        for r in range(0, 8, 2):
            T = [24, 25]
            for k in range(2): a(f'v_mul_f32 v{T[k]}, v{A+r+k}, v{A+r+k}')
            for k in range(2): a(f'v_fma_f32 v{T[k]}, v{T[k]}, s39, v22')
            for k in range(2): a(f'v_mul_f32 v{T[k]}, v{T[k]}, v{A+r+k}')
            for k in range(2): a(f'v_exp_f32 v{T[k]}, v{T[k]}')
            for k in range(2): a(f'v_mul_f32 v{A+r+k}, v{A+r+k}, v{A+r+k+8}')
            for k in range(2): a(f'v_add_f32 v{T[k]}, 1.0, v{T[k]}')
            for k in range(2): a(f'v_rcp_f32 v{T[k]}, v{T[k]}')
            a('s_nop 0')
            for k in range(2): a(f'v_mul_f32 v{A+r+k}, v{A+r+k}, v{T[k]}')
            a(f'v_cvt_pk_bf16_f32 v{HX[i]+r//2}, v{A+r}, v{A+r+1}')
    HX = [80, 84, 88, 92, 96, 100, 104, 64, 68]
    wr = lambda i: a(f'ds_write_b128 v20, {vr(HX[i],4)} offset:{1024*i}')
    def ex(st, j):
        if st == 17 and j >= 11:
            geglu(j - 11)
            if j == 14:
                a('s_waitcnt lgkmcnt(0)\n s_barrier')
                for i in range(4): wr(i)
            if j > 14: wr(j - 11)
        return [pend.pop(0)] if pend and j % 2 else []
    gemm_phase(a, 18, 18,
        lambda st, j, b: [f'ds_read_b64_tr_b16 {vr(b+2*t,2)}, v16 offset:{64*(j%9)+(16*(j//9)+4*t)*576}' for t in range(2)],
        lambda st, j, b: mf(ACC+16*(j%9), b, HR+8*(st%4)+4*(j//9), '0' if st == 0 and j < 9 else None),
        [32, 36, 40, 44, 48, 52], 4, pre_g, ex)
    assert not pend
    for i in (7, 8): geglu(i); wr(i)
    def pre_d(st):
        a.wvm(('d', 18+st)); a('s_waitcnt lgkmcnt(0)\n s_barrier')
        if st in (0, 1, 2, 4, 8): a.stamp()
        if st > 0:
            for r in (17, 18): a(f'v_add_u32 v{r}, {(SF(18+st)-SF(17+st)) & 0xffffffff}, v{r}')
        if 1 <= st <= 5: pend.extend(loads(21 + st))
    def outp(st):
        C = C0 + 16*(st & 1); K = PK + 8*(st & 1)
        L = [(f'v_cvt_pk_bf16_f32 v{K+i}, v{C+2*i}, v{C+2*i+1}', None) for i in range(8)]
        L.insert(4, (f's_add_u32 s46, s33, {st*1024}\n buffer_store_dwordx4 {vr(K,4)}, v2, s[20:23], s46 offen ' + STB, 'st'))
        return L + [(f'buffer_store_dwordx4 {vr(K+4,4)}, v2, s[20:23], s46 offen offset:256 ' + STB, 'st')]
    def ex_d(st, j):
        L = []
        if st == 0 and j == 0: L += [(f'ds_read_b128 {vr(HP+4*i,4)}, v21 offset:{1024*i}', 'op') for i in range(9)]
        if st == 0 and j == 5: a('s_barrier'); pend.extend(loads(20) + loads(21))
        if st > 0 and 3 <= j < 8: L += outp(st-1)[2*(j-3):2*(j-3)+2]
        if pend and (st == 0 or (j % 2 == 0 and (j >= 8 or j < 3))): L.append(pend.pop(0))
        return L
    gemm_phase(a, 9, 18,
        lambda st, j, b: [f'ds_read_b64_tr_b16 {vr(b+2*t,2)}, v{17+j//9} offset:{4096*(j%9)+1024*t}' for t in range(2)],
        lambda st, j, b: mf(C0+16*(st&1), b, HX[j] if j < 9 else HP+4*(j-9), '0' if j == 0 else None),
        [32, 36, 40, 44, 48, 52], 4, pre_d, ex_d)
    assert not pend
    for t in outp(8): a(*t)
    a.dump(0x7100000, 20)
    a('s_endpgm')
    return a, 256, 256, 512, 147456
```

```python
from asm import *
WS_MOD, WS_H, WS_X1, WS_H2, WS_PA, WS_PB, PSZ = 0, 0x10000, 0x300000, 0x600000, 0x1000000, 0x4000000, 2359296
WS_SZ = 0x8000000
def srd(a, d, koff, nbytes):
    a(f's_load_dwordx2 s[{d}:{d+1}], s[0:1], {koff}\n s_mov_b32 s{d+2}, {nbytes}\n s_mov_b32 s{d+3}, 0x00020000')
def guard(a, n):
    l = a.label('go')
    a(f's_cmp_lt_u32 s2, {n}\n s_cbranch_scc1 {l}\n s_endpgm\n {l}:')
def unpack(a, d, s, n):
    for i in range(n):
        a(f'v_lshlrev_b32 v{d+2*i}, 16, v{s+i}\n v_and_b32 v{d+2*i+1}, 0xffff0000, v{s+i}')
def k_mod(a):
    srd(a, 4, 72, 1152); srd(a, 8, 80, 576*6912); srd(a, 12, 104, WS_SZ); srd(a, 20, 96, 256)
    a('''v_lshrrev_b32 v1, 3, v0
    v_and_b32 v2, 7, v0
    v_lshlrev_b32 v3, 4, v1
    s_mov_b32 s16, 55296
    v_mul_lo_u32 v4, v1, s16
    v_lshl_add_u32 v4, v2, 4, v4
    s_lshl_b32 s17, s2, 7
    s_waitcnt lgkmcnt(0)
    buffer_load_dwordx4 v[8:11], v3, s[4:7], 0 offen''')
    for j in range(8):
        a(f'buffer_load_dwordx4 v[{16+4*j}:{19+4*j}], v4, s[8:11], s17 offen\n s_add_u32 s17, s17, 6912')
    a('s_waitcnt vmcnt(8)')
    unpack(a, 48, 8, 4)
    for j in range(8):
        a(f'v_mul_f32 v{56+j}, 0xbfb8aa3b, v{48+j}\n v_exp_f32 v{56+j}, v{56+j}\n v_add_f32 v{56+j}, 1.0, v{56+j}\n v_rcp_f32 v{56+j}, v{56+j}\n v_mul_f32 v{48+j}, v{48+j}, v{56+j}')
    for j in range(4): a(f'v_cvt_pk_bf16_f32 v{8+j}, v{48+2*j}, v{49+2*j}')
    unpack(a, 48, 8, 4)
    for j in range(8):
        a(f's_waitcnt vmcnt({7-j})')
        unpack(a, 56, 16+4*j, 4)
        for c in range(8):
            a(f'v_mul_f32 v{64+c}, v{48+j}, v{56+c}' if j == 0 else f'v_fmac_f32 v{64+c}, v{48+j}, v{56+c}')
    a('''v_lshlrev_b32 v5, 5, v0
    ds_write_b128 v5, v[64:67]
    ds_write_b128 v5, v[68:71] offset:16
    v_and_b32 v6, 63, v0
    v_lshrrev_b32 v7, 6, v0
    v_lshlrev_b32 v6, 2, v6
    v_lshl_add_u32 v7, v7, 11, v6
    s_waitcnt lgkmcnt(0)
    s_barrier''')
    for i in range(8): a(f'ds_read_b32 v{16+i}, v7 offset:{256*i}')
    a('s_waitcnt lgkmcnt(0)')
    for i in range(1, 8): a(f'v_add_f32 v16, v16, v{16+i}')
    a('''v_lshlrev_b32 v5, 2, v0
    ds_write_b32 v5, v16 offset:18432
    s_waitcnt lgkmcnt(0)
    s_barrier
    v_readfirstlane_b32 s18, v0
    s_cmp_lt_u32 s18, 64
    s_cbranch_scc1 kmod_fin
    s_endpgm
    kmod_fin:''')
    for i in range(9): a(f'ds_read_b32 v{16+i}, v6 offset:{18432+256*i}')
    a('s_waitcnt lgkmcnt(0)')
    for i in range(1, 9): a(f'v_add_f32 v16, v16, v{16+i}')
    a('''v_cvt_pk_bf16_f32 v16, v16, v16
    v_lshlrev_b32 v16, 16, v16
    s_sub_u32 s19, s2, 9
    s_cmp_lt_u32 s19, 9
    s_cselect_b32 s24, 1.0, 0
    s_sub_u32 s19, s2, 36
    s_cmp_lt_u32 s19, 9
    s_cselect_b32 s24, 1.0, s24
    v_add_f32 v16, s24, v16
    v_cvt_pk_bf16_f32 v16, v16, v16
    v_lshlrev_b32 v16, 16, v16
    s_lshl_b32 s17, s2, 8
    buffer_store_dword v16, v6, s[12:15], s17 offen
    s_cmp_lt_u32 s2, 18
    s_cbranch_scc0 kmod_end
    s_cmp_lt_u32 s2, 9
    s_cselect_b32 s17, 32, 0
    s_cselect_b32 s18, 0, 9
    s_sub_u32 s18, s2, s18
    s_lshl_b32 s18, s18, 9
    s_add_u32 s17, s17, s18
    s_add_u32 s17, s17, 0x4000
    v_lshrrev_b32 v1, 3, v0
    v_and_b32 v2, 7, v0
    v_lshlrev_b32 v2, 2, v2
    v_lshl_add_u32 v1, v1, 6, v2
    buffer_store_dword v16, v1, s[12:15], s17 offen
    kmod_end:
    s_endpgm''')
def rowsum(a, v, t, ldsoff):
    a(f'''v_add_f32_dpp v{v}, v{v}, v{v} row_ror:8 row_mask:0xf bank_mask:0xf
    ds_swizzle_b32 v{t}, v{v} offset:0x401F
    s_waitcnt lgkmcnt(0)
    v_add_f32 v{v}, v{v}, v{t}
    v_mov_b32 v{t}, v{v}
    v_permlane32_swap_b32 v{v}, v{t}
    v_add_f32 v{v}, v{v}, v{t}
    ds_write_b32 v3, v{v} offset:{ldsoff}
    s_waitcnt lgkmcnt(0)
    s_barrier
    ds_read_b128 v[{t}:{t+3}], v2 offset:{ldsoff}
    ds_read_b128 v[{t+4}:{t+7}], v2 offset:{ldsoff+16}
    ds_read_b32 v{v}, v2 offset:{ldsoff+32}
    s_waitcnt lgkmcnt(0)''')
    for i in range(0, 8, 2): a(f'v_add_f32 v{t+i}, v{t+i}, v{t+i+1}')
    a(f'v_add_f32 v{t}, v{t}, v{t+2}\n v_add_f32 v{t+4}, v{t+4}, v{t+6}\n v_add_f32 v{v}, v{v}, v{t}\n v_add_f32 v{v}, v{v}, v{t+4}')
import os
PFM = os.environ.get('PFM', 'early')
def warm(a):
        a(f'''v_lshlrev_b32 v50, 7, v0
        v_cmp_gt_u32 vcc, 0x90, v0
        s_and_saveexec_b64 s[40:41], vcc
        s_cbranch_execz pf_kv
        s_mul_i32 s17, s2, {144*128}
        buffer_load_dword v51, v50, s[24:27], s17 offen
        s_mov_b64 exec, s[40:41]
        s_waitcnt vmcnt(1)
        s_branch pf_end
        pf_kv:
        s_mov_b64 exec, s[40:41]
        v_readfirstlane_b32 s18, v0
        s_branch pf_done
        v_and_b32 v50, 63, v0
        v_lshlrev_b32 v50, 7, v50
        s_lshr_b32 s17, s2, 4
        s_lshl_b32 s17, s17, 19
        s_and_b32 s18, s2, 15
        s_lshl_b32 s18, s18, 13
        s_add_u32 s17, s17, s18
        s_add_u32 s17, s17, {1536*256}
        buffer_load_dword v51, v50, s[28:31], s17 offen
        buffer_load_dword v51, v50, s[32:35], s17 offen
        s_waitcnt vmcnt(2)
        s_branch pf_end
        pf_done:
        s_waitcnt vmcnt(0)
        pf_end:''')
def k_ln(mode):
    a = Asm()
    if mode == 1:
        a('s_cmp_lt_u32 s2, 54\n s_cbranch_scc0 ln1')
        k_mod(a)
        a('ln1:\n s_sub_u32 s2, s2, 56')
        srd(a, 20, 96, 256); srd(a, 24, 24, 576*8192); srd(a, 28, 8, 16*524288); srd(a, 32, 16, 16*524288); srd(a, 36, 32, 4096*1152)
    guard(a, 256)
    srd(a, 4, 0, PSZ); srd(a, 12, 104, WS_SZ); srd(a, 8, 88, PSZ)
    a('''v_lshlrev_b32 v1, 4, v0
    v_and_b32 v2, 7, v0
    v_lshrrev_b32 v5, 3, v0
    s_movk_i32 s16, 1152
    v_mul_lo_u32 v4, v2, s16
    v_lshl_add_u32 v4, v5, 4, v4
    v_lshlrev_b32 v5, 5, v5
    v_lshlrev_b32 v2, 6, v2
    v_lshrrev_b32 v3, 6, v0
    v_lshl_add_u32 v3, v3, 2, v2
    s_mul_i32 s16, s2, 9216
    s_waitcnt lgkmcnt(0)''')
    X, M, P, A, T = (8, 16, 48, 112, 120) if mode != 1 else (8, 16, 12, 32, 40)
    if mode == 5:
        a(f's_add_u32 s17, s16, {WS_X1}\n buffer_load_dwordx4 v[{X}:{X+3}], v1, s[12:15], s17 offen', 'x')
    else:
        a(f'buffer_load_dwordx4 v[{X}:{X+3}], v4, s[4:7], s16 offen', 'x')
    if mode != 1:
        a(f's_add_u32 s17, s16, {WS_PA if mode == 3 else WS_PB}')
        for p in range(16):
            a(f'buffer_load_dwordx4 v[{P+4*p}:{P+4*p+3}], v1, s[12:15], s17 offen', f'p{p}')
            if p < 15: a(f's_add_u32 s17, s17, {PSZ}')
    segs = {1: [0, 1], 3: [2, 3, 4], 5: [5]}[mode]
    def modloads(fl=''):
      for i, sg in enumerate(segs):
        a(f's_movk_i32 s18, {sg*2304}\n buffer_load_dwordx4 v[{M+8*i}:{M+8*i+3}], v5, s[12:15], s18 offen {fl}\n buffer_load_dwordx4 v[{M+8*i+4}:{M+8*i+7}], v5, s[12:15], s18 offen offset:16 {fl}', 'm')
    if mode != 1: modloads()
    if mode != 1:
        for p in range(16):
            a.wvm(f'p{p}')
            if p == 0: unpack(a, A, P, 4)
            else:
                unpack(a, T, P+4*p, 4)
                for c in range(8): a(f'v_add_f32 v{A+c}, v{A+c}, v{T+c}')
        a.wvm('m')
        unpack(a, T, X, 4)
        for c in range(8): a(f'v_fma_f32 v{A+c}, v{A+c}, v{M+c}, v{T+c}')
        for c in range(4): a(f'v_cvt_pk_bf16_f32 v{X+c}, v{A+2*c}, v{A+2*c+1}')
        if mode == 5:
            a(f'buffer_store_dwordx4 v[{X}:{X+3}], v4, s[8:11], s16 offen\n s_endpgm')
            return a, 136, 256, 576, 0
        a(f's_add_u32 s17, s16, {WS_X1}\n buffer_store_dwordx4 v[{X}:{X+3}], v1, s[12:15], s17 offen')
        M += 8
    else:
        if PFM == 'early': warm(a)
        else: a.wvm('x')
    unpack(a, A, X, 4)
    S = 6
    a(f'v_add_f32 v{S}, v{A}, v{A+1}')
    for c in range(2, 8): a(f'v_add_f32 v{S}, v{S}, v{A+c}')
    rowsum(a, S, T, 0)
    a(f'v_mul_f32 v{S}, 0x3ae38e39, v{S}')
    for c in range(8): a(f'v_sub_f32 v{A+c}, v{A+c}, v{S}')
    a(f'v_mul_f32 v{S}, v{A}, v{A}')
    for c in range(1, 8): a(f'v_fmac_f32 v{S}, v{A+c}, v{A+c}')
    rowsum(a, S, T, 512)
    a(f'v_mov_b32 v7, 0x3727c5ac\n v_fmac_f32 v7, 0x3ae38e39, v{S}\n v_rsq_f32 v7, v7')
    if mode == 1:
        for c in range(8): a(f'v_mul_f32 v{A+c}, v{A+c}, v7')
    else:
        a.wvm('m')
        for c in range(8): a(f'v_mul_f32 v{A+c}, v{A+c}, v7\n v_fma_f32 v{A+c}, v{A+c}, v{M+8+c}, v{M+c}')
    for c in range(4): a(f'v_cvt_pk_bf16_f32 v{P+c}, v{A+2*c}, v{A+2*c+1}')
    a(f's_add_u32 s17, s16, {WS_H if mode == 1 else WS_H2}\n buffer_store_dwordx4 v[{P}:{P+3}], v1, s[12:15], s17 offen\n s_endpgm')
    return (a, 136, 256, 576, 1024) if mode != 1 else (a, 72, 312, 576, 18432+2304)
```

```python
from asm import *
from small import *
import os
STA, STB = os.environ.get('STA', 'sc1'), os.environ.get('STB', 'sc1')
FUSE = int(os.environ.get('FUSE', '1'))
MF = 'v_mfma_f32_32x32x16_bf16'
def mf(d, A, B, c=None): return f'{MF} {vr(d,16)}, {vr(A,4)}, {vr(B,4)}, ' + (vr(d,16) if c is None else c)
_p = [0]
def mf16(d, A, B, c=None):
    _p[0] ^= 1
    o = 8 * _p[0]
    M = 'v_mfma_f32_16x16x32_bf16'
    return '\n'.join(f'{M} {vr(d+o+4*i,4)}, {vr(A,4)}, {vr(B,4)}, {vr(d+o+4*i,4)}' for i in range(2))
def weave(a, mfmas, fill):
    n = len(mfmas); k = 0
    for i, m in enumerate(mfmas):
        m()
        e = (len(fill) * (i + 1) + n - 1) // n
        while k < e: a(*fill[k]); k += 1
def merge(*ls):
    it = sorted(((j + 0.5) / len(l), i, j) for i, l in enumerate(ls) for j in range(len(l)))
    return [ls[i][j] for _, i, j in it]
def dma(vo, s, soff): return f'buffer_load_dwordx4 v{vo}, s[{s}:{s+3}], {soff} offen lds'
def lanebits(a):
    a('''v_and_b32 v1, 63, v0
    v_lshrrev_b32 v8, 6, v0
    v_readfirstlane_b32 s24, v8
    v_lshrrev_b32 v8, 5, v1
    v_bfe_u32 v9, v1, 2, 2
    v_bfe_u32 v10, v1, 4, 1
    v_and_b32 v11, 3, v1
    v_lshlrev_b32 v12, 1, v11
    v_lshrrev_b32 v13, 1, v11
    v_or_b32 v12, v12, v13
    v_and_b32 v12, 3, v12
    v_bfe_u32 v13, v1, 3, 2
    v_mul_u32_u24 v2, 9216, v13
    v_lshl_add_u32 v2, v8, 7, v2
    v_and_b32 v13, 7, v1
    v_lshl_add_u32 v2, v13, 4, v2''')
    if os.environ.get('PRIO'): a('s_cmp_lt_u32 s24, 4\n s_cbranch_scc1 prio_d\n s_setprio 1\n prio_d:')
def gemm_phase(a, nst, per, reads, mfma, ring, dist, pre_stage, extra):
    N = nst * per
    def rd(i):
        st, j = divmod(i, per)
        if j == 0: pre_stage(st)
        for t in reads(st, j, ring[i % len(ring)]): a(t, ('f', i))
    for i in range(dist): rd(i)
    for i in range(N):
        st, j = divmod(i, per)
        a.wlg(('f', i))
        a(mfma(st, j, ring[i % len(ring)]))
        if i + dist < N: rd(i + dist)
        for t in extra(st, j): a(*t)
SL = lambda i: 32768 + 32768 * ((i - 9) % 4)
QS = lambda i: 16384 + 49152 * (i % 3)
def k_attn():
    a = Asm(); a.stamp(); guard(a, 256)
    srd(a, 4, 24, 576*8192); srd(a, 8, 8, 16*524288); srd(a, 12, 16, 16*524288); srd(a, 16, 32, 4096*1152); srd(a, 20, 104, WS_SZ)
    def early():
        lanebits(a)
        a(f'''s_and_b32 s25, s2, 7
        s_bfe_u32 s26, s2, 0x10003
        s_lshl_b32 s26, s26, 3
        s_add_u32 s25, s25, s26
        s_lshr_b32 s26, s2, 4
        s_and_b32 s28, s24, 3
        s_lshr_b32 s29, s24, 2
        s_lshl_b32 s30, s24, 10
        s_lshl_b32 s31, s26, 2
        s_add_u32 s31, s31, s28
        s_mul_i32 s31, s31, 36864
        s_add_u32 s32, s31, {WS_H}
        s_mul_i32 s33, s25, {PSZ}
        s_add_u32 s33, s33, s31
        s_lshl_b32 s34, s29, 9
        s_add_u32 s33, s33, s34
        s_add_u32 s33, s33, {WS_PA}
        s_lshl_b32 s34, s25, 9
        s_lshl_b32 s35, s25, 19
        s_add_u32 s35, s35, {1536*256}
        s_mul_i32 s36, s25, {256*1152}
        s_mul_i32 s32, s26, {16*9216}
        s_lshl_b32 s37, s24, 7
        s_add_u32 s32, s32, s37
        s_add_u32 s32, s32, {WS_H}
        s_lshl_b32 s47, s24, 6
        s_add_u32 s47, s47, 0x4000
        v_lshrrev_b32 v13, 3, v1
        v_mul_u32_u24 v253, 9216, v13
        v_and_b32 v13, 7, v1
        v_lshl_add_u32 v253, v13, 4, v253
        v_and_b32 v13, 31, v1
        v_lshlrev_b32 v252, 12, v8
        v_lshl_add_u32 v252, v13, 4, v252
        s_lshl_b32 s37, s24, 9
        s_add_u32 s37, s37, {QS(0)+32768}
        v_add_u32 v252, s37, v252
        ; vDq
        s_lshl_b32 s37, s24, 1
        v_add_u32 v13, s37, v8
        v_and_b32 v14, 3, v13
        v_bfe_u32 v15, v1, 2, 3
        v_xor_b32 v14, v14, v15
        v_lshlrev_b32 v3, 13, v13
        v_lshl_add_u32 v3, v14, 6, v3
        v_lshl_add_u32 v3, v11, 4, v3
        s_waitcnt lgkmcnt(0)''')
    def late():
        a(f'''
        s_lshl_b32 s37, s24, 2
        v_lshrrev_b32 v13, 4, v1
        v_add_u32 v14, s37, v13
        v_and_b32 v15, 15, v1
        v_xor_b32 v7, v15, v14
        v_and_b32 v7, 15, v7
        v_lshlrev_b32 v4, 8, v14
        v_lshl_add_u32 v5, v15, 4, v4
        v_lshl_add_u32 v4, v7, 4, v4
        v_lshlrev_b32 v13, 6, v13
        v_xor_b32 v5, v5, v13
        ; vDo
        s_lshl_b32 s37, s24, 3
        v_lshrrev_b32 v13, 3, v1
        v_add_u32 v13, s37, v13
        v_mul_u32_u24 v6, 1152, v13
        v_bfe_u32 v13, v1, 2, 1
        v_xor_b32 v13, v13, v10
        v_lshl_add_u32 v6, v13, 6, v6
        v_lshl_add_u32 v6, v11, 4, v6
        ; aQ[0..3] v16..19
        v_lshl_add_u32 v13, v8, 3, v9
        v_lshlrev_b32 v16, 9, v13
        s_lshl_b32 s37, s29, 2
        v_xor_b32 v13, s37, v9
        v_lshl_add_u32 v16, v13, 6, v16
        v_lshl_add_u32 v16, v10, 5, v16
        v_lshl_add_u32 v16, v12, 3, v16
        v_add_u32 v16, {QS(0)}, v16
        v_xor_b32 v17, 64, v16
        v_xor_b32 v18, 0x80, v16
        v_xor_b32 v19, 0xc0, v16
        ; aV[0..3] v20..23
        v_lshl_add_u32 v13, v8, 2, v9
        v_lshlrev_b32 v20, 8, v13
        v_lshl_add_u32 v20, v9, 6, v20
        v_lshl_add_u32 v20, v10, 5, v20
        v_lshl_add_u32 v20, v11, 3, v20
        v_add_u32 v20, {SL(8)}, v20
        v_xor_b32 v21, 64, v20
        v_xor_b32 v22, 0x80, v20
        v_xor_b32 v23, 0xc0, v20
        ; aK[0..7] v24..31
        v_and_b32 v13, 31, v1
        v_lshlrev_b32 v24, 8, v13
        v_and_b32 v13, 15, v1
        v_xor_b32 v13, v13, v8
        v_lshl_add_u32 v24, v13, 4, v24''')
        for s in range(1, 8): a(f'v_xor_b32 v{24+s}, {s<<5}, v24')
        a(f'''v_lshl_add_u32 v13, v8, 2, v9
        v_lshlrev_b32 v15, 7, v13
        v_lshrrev_b32 v13, 1, v9
        v_xor_b32 v13, s29, v13
        v_lshl_add_u32 v15, v13, 6, v15
        v_lshl_add_u32 v15, v10, 5, v15
        v_lshl_add_u32 v15, v12, 3, v15
        v_lshlrev_b32 v14, 4, v1
        s_lshl_b32 s37, s28, 12
        s_add_u32 s37, s37, {QS(0)+32768}
        v_add_u32 v13, s37, v14''')
    def prefetch():
        a(f'''v_lshrrev_b32 v252, 2, v0
        v_lshlrev_b32 v252, 13, v252
        v_lshl_add_u32 v252, v11, 7, v252
        v_lshlrev_b32 v253, 7, v0
        s_mul_i32 s37, s26, {36*8192}
        s_add_u32 s37, s37, s34
        s_mul_i32 s38, s26, {16*1152}
        s_add_u32 s38, s38, s36
        v_cmp_gt_u32 vcc, 0x90, v0
        s_and_saveexec_b64 s[40:41], vcc
        s_cbranch_execz pf_kv
        buffer_load_dword v254, v252, s[4:7], s37 offen
        buffer_load_dword v254, v253, s[16:19], s38 offen
        s_branch pf_done
        pf_kv:
        s_mov_b64 exec, s[40:41]
        s_lshl_b32 s37, s26, 13
        s_add_u32 s37, s37, s35
        v_lshlrev_b32 v253, 7, v1
        s_cmp_eq_u32 s24, 3
        s_cbranch_scc0 pf_done
        buffer_load_dword v254, v253, s[12:15], s37 offen
        buffer_load_dword v254, v253, s[8:11], s37 offen
        pf_done:
        s_mov_b64 exec, s[40:41]''')
        del a.vm[-4:]
    HB, AQ, QP = 112, 48, 224
    def piece(vo, sd, m0, soff_reg, soff_add, tag):
        return [(f's_add_u32 m0, s30, {m0}\n s_add_u32 s38, {soff_reg}, {soff_add}\n ' + dma(vo, sd, 's38'), tag)]
    XR, XT, XS = 136, 160, 168
    xl = lambda j, tag: [(f's_add_u32 s38, s32, {j*1024+u*8*9216}\n buffer_load_dwordx4 {vr(XR+8*(j%3)+4*u,4)}, v253, s[20:23], s38 offen', tag) for u in range(2)]
    cl = lambda j, sb: f's_add_u32 s46, s47, {j*512}\n s_load_dwordx16 s[{sb}:{sb+15}], s[20:21], s46'
    def modulate(j):
        sb = 64 if j & 1 else 84
        L = [cl(j + 1, 84 if j & 1 else 64)] if 1 <= j < 8 else []
        L += [f'v_mov_b32 v{XS+i}, s{sb+8+i}' for i in range(8)]
        if j: L.append(f'v_add_u32 v252, {(QS(j)-QS(j-1)) & 0xffffffff}, v252')
        for u in range(2):
            X = XR + 8*(j % 3) + 4*u
            for i in range(4):
                L += [f'v_lshlrev_b32 v{XT+2*i}, 16, v{X+i}', f'v_and_b32 v{XT+2*i+1}, 0xffff0000, v{X+i}']
                L += [f'v_fma_f32 v{XT+2*i+k}, v{XT+2*i+k}, s{sb+2*i+k}, v{XS+2*i+k}' for k in range(2)]
                L += [f'v_cvt_pk_bf16_f32 v{X+i}, v{XT+2*i}, v{XT+2*i+1}']
            L += [f'ds_write_b128 v252, {vr(X,4)} offset:{8192*u}']
        return [(t, None) for t in L]
    def loads(idx):
        L = []
        if idx < 9:
            if idx < 8: L += xl(idx + 1, ('d', idx))
            for q in range(4): L += piece(3, 4, QS(idx) + q*8192, 's34', idx*524288 + q*131072, ('d', idx))
        elif idx < 17:
            t = idx - 9
            for q in range(2): L += piece(5, 12, SL(idx) + q*8192, 's35', t*16384 + q*8192, ('d', idx))
            for q in range(2): L += piece(4, 8, SL(idx) + 16384 + q*8192, 's35', (t+1)*16384 + q*8192, ('d', idx))
        else:
            for q in range(4): L += piece(6, 16, SL(idx) + q*8192, 's36', q*64*1152 + (idx-17)*128, ('d', idx))
        return L
    early()
    for t in xl(0, 'x0'): a(*t)
    a(cl(0, 84)); a(cl(1, 64))
    for t in loads(0): a(*t)
    late()
    for t in loads(1): a(*t)
    a.wvm('x0'); a('s_waitcnt lgkmcnt(0)')
    for t in modulate(0): a(*t)
    mq = []
    pend = []
    for q in range(2): pend += piece(4, 8, q*8192, 's35', q*8192, 'k0')
    def pre_q(st):
        while mq: a(*mq.pop(0))
        a.wvm(('d', st)); a('s_waitcnt lgkmcnt(0)\n s_barrier')
        if st in (0, 1, 4, 8): a.stamp()
        if st == 0 and os.environ.get('L2PF'): prefetch()
        if st > 0:
            for r in (13, 16, 17, 18, 19): a(f'v_add_u32 v{r}, {(QS(st)-QS(st-1)) & 0xffffffff}, v{r}')
        pend.extend(loads(st + 2))
        assert not mq
        if st < 8: mq.extend(modulate(st + 1))
    def ex(st, j): return [mq.pop(0) for _ in range(min(4, len(mq)))] + ([pend.pop(0)] if pend and j % 2 else [])
    gemm_phase(a, 9, 16,
        lambda st, j, b: [f'ds_read_b64_tr_b16 {vr(b+2*t,2)}, v{16+(j&3)} offset:{(16*(j>>2)+4*t)*512}' for t in range(2)]
           + ([f'ds_read_b128 {vr(HB+4*(j>>2),4)}, v13 offset:{1024*(j>>2)}'] if j % 4 == 0 else []),
        lambda st, j, b: mf(AQ+16*(j&3), b, HB+4*(j>>2), '0' if st == 0 and j < 4 else None),
        [32, 36, 40, 44, 128, 132], 4, pre_q, ex)
    assert not pend
    a('s_barrier')
    for t in loads(11): a(*t)
    O, S0, S1, NM, P, KF = 48, 112, 128, 144, 160, 168
    VF = [32, 36, 40, 44, 200, 204, 208, 212]
    kread = lambda base: [(f'ds_read_b128 {vr(KF+4*s,4)}, v{24+s} offset:{base}', ('k', s)) for s in range(8)]
    a.stamp()
    for t in kread(0): a(*t)
    a('s_mov_b32 s38, 0x3e0293ee')
    for i in range(0, 64, 2):
        a(f'v_mul_f32 v{AQ+i}, s38, v{AQ+i}\n v_mul_f32 v{AQ+i+1}, s38, v{AQ+i+1}\n v_cvt_pk_bf16_f32 v{QP+i//2}, v{AQ+i}, v{AQ+i+1}')
    def qk(Sn, c0):
        def f(s):
            def g(): a.wlg(('k', s | 3)); a(mf(Sn, KF+4*s, QP+4*s, c0 if s == 0 else None))
            return g
        return [f(s) for s in range(8)]
    weave(a, qk(S0, '0'), [(f'v_mov_b32 v{O+i}, 0', None) for i in range(64)])
    for t in kread(8192): a(*t)
    def vmax(Sn):
        L = [(f'v_max3_f32 v8, v{Sn}, v{Sn+1}, v{Sn+2}', None), (f'v_max3_f32 v9, v{Sn+3}, v{Sn+4}, v{Sn+5}', None)]
        for i in range(6, 14, 4): L += [(f'v_max3_f32 v8, v8, v{Sn+i}, v{Sn+i+1}', None), (f'v_max3_f32 v9, v9, v{Sn+i+2}, v{Sn+i+3}', None)]
        return L + [(f'v_max3_f32 v8, v8, v{Sn+14}, v{Sn+15}', None), ('v_max_f32 v8, v8, v9', None)]
    a('v_mov_b32 v7, 0\n s_mov_b32 s27, 0\n s_mov_b32 s39, 0x41f00000')
    for r in range(24, 32): a(f'v_add_u32 v{r}, {SL(8)+16384}, v{r}')
    for t in vmax(S0): a(*t)
    a('v_mov_b32 v9, v8\n v_permlane32_swap_b32 v8, v9\n v_max_f32 v8, v8, v9')
    for i in range(16): a(f'v_sub_f32 v{S0+i}, v{S0+i}, v8\n v_sub_f32 v{NM+i}, 0, v8')
    a(f"""s_mov_b32 s40, {SL(8)}
    s_add_u32 s42, s35, {3*16384}
    s_add_u32 s43, s35, {4*16384}
    s_movk_i32 s46, 8192
    s_movk_i32 s47, 16384
    s_lshl_b32 s37, s2, 3
    s_add_u32 s37, s37, s24
    s_movk_i32 s38, 48
    s_cmp_ge_u32 s37, 683
    s_cselect_b32 s38, 56, s38
    s_cselect_b32 s44, 683, 0
    s_cmp_ge_u32 s37, 1366
    s_cselect_b32 s38, 64, s38
    s_cselect_b32 s44, 1366, s44
    s_sub_u32 s37, s37, s44
    s_mul_i32 s37, s37, {61*128}
    s_load_dwordx2 s[4:5], s[0:1], s38
    s_mov_b32 s6, {576*9216}
    v_lshlrev_b32 v216, 7, v1
    s_mul_i32 s38, s26, {16*1152}
    s_add_u32 s38, s38, s36
    s_mul_i32 s44, s24, {18*128}
    s_add_u32 s38, s38, s44
    s_mov_b64 exec, 0x3ffff
    buffer_load_dword v217, v216, s[16:19], s38 offen
    s_mov_b64 exec, -1
    v_add_u32 v216, s37, v216""")
    rare = []
    COST = lambda t: 8 if t.startswith('v_exp') else (4 if t.startswith('v_') else (24 if 'buffer' in t else 0))
    def block(Sc, Sn, kb, last, nok, early, top=None):
        N = lambda x: (x, None)
        E = [N(f'v_exp_f32 v{Sc+i}, v{Sc+i}') for i in range(16)]
        C = [N(f'v_cvt_pk_bf16_f32 v{P+i}, v{Sc+2*i}, v{Sc+2*i+1}') for i in range(8)]
        A = [N(f'v_add_f32 v10, v{Sc}, v{Sc+1}')] + [N(f'v_add_f32 v{10 if i&1 else 7}, v{10 if i&1 else 7}, v{Sc+i}') for i in range(2, 16)] + [N('v_add_f32 v7, v7, v10')]
        seq = E[0:3]
        for i in range(8):
            seq += [C[i]] + E[2*i+3:2*i+5]
            if i >= 2: seq += A[i-2:i-1]
        seq = seq[:7] + merge(seq[7:], early)
        tail = A[6:] + ([] if last else vmax(Sn))
        gaps = [[] for _ in range(16)]
        tot = sum(COST(t[0]) for t in seq); c = 0
        for t in seq:
            gaps[min(10, int(c * 11 / tot))].append(t); c += COST(t[0])
        for k, t in enumerate(tail): gaps[11 + k * 5 // len(tail)].append(t)
        vrd = [(f'ds_read_b64_tr_b16 {vr(VF[4*ks+db]+2*t,2)}, v{20+db} offset:{kb*8192+(16*ks+8*t)*256}', ('v', ks, db)) for ks in range(2) for db in range(4) for t in range(2)]
        for k, t in enumerate(vrd): gaps[(2 + k * 8 // 16) if top else k * 10 // 16].insert(1, t)
        if not nok:
            for k, t in enumerate(kread(kb * 8192)): gaps[8 + k].insert(1, t)
        q = qk(Sn, vr(NM, 16))
        for g in range(16):
            if g < 8:
                if not last: q[g]()
            else:
                ks, db = divmod(g - 8, 4)
                a.wlg(('v', ks, db | 1)); a(mf(O+16*db, VF[4*ks+db], P+4*ks))
            for t in gaps[g]: a(*t)
            if top and g == 1: top()
            if last and g == 10: a('s_waitcnt lgkmcnt(0)\n s_barrier')
        if not last:
            l1, l2 = a.label('rare'), a.label('back')
            a(f'v_cmp_lt_f32 vcc, s39, v8\n s_cbranch_vccnz {l1}\n {l2}:')
            rare.append((l1, l2, Sn))
    def dmas(h, tag):
        so = f's{42+h}'
        return [(f's_add_u32 m0, s41, {h*16384}\n ' + dma(5-h, 12-4*h, so), tag),
                (f's_add_u32 m0, s41, {h*16384+8192}\n s_add_u32 s38, {so}, s46\n s_add_u32 {so}, {so}, s47\n ' + dma(5-h, 12-4*h, 's38'), tag)]
    def iteration(last):
      def top():
        a("""s_add_u32 s44, s40, 32768
        s_cmp_eq_u32 s44, 163840
        s_cselect_b32 s44, 32768, s44
        s_sub_u32 s45, s44, s40
        s_add_u32 s41, s40, s30
        s_mov_b32 s40, s44""")
        for r in range(20, 24): a(f'v_add_u32 v{r}, s45, v{r}')
        if not last: a('s_cmp_ge_u32 s27, 4\n s_cbranch_scc1 att_sw\n att_swb:')
        a('s_waitcnt vmcnt(9) lgkmcnt(0)\n s_barrier')
      tag = ('d', 19) if last else None
      pf = [] if last else [('s_mov_b64 exec, 0x1ff\n buffer_load_dword v217, v216, s[4:7], 0 offen\n s_mov_b64 exec, -1\n v_add_u32 v216, 0x480, v216', None)]
      block(S0, S1, 0, False, last, merge([(f'v_add_u32 v{r}, s45, v{r}', None) for r in range(24, 32)], dmas(0, tag)), top)
      block(S1, S0, 1, last, last, dmas(1, tag) + pf)
    a.stamp()
    a('att_loop:')
    iteration(False)
    a('s_add_u32 s27, s27, 1\n s_cmp_lt_u32 s27, 7\n s_cbranch_scc1 att_loop')
    a.vm += [('d', 17)] * 4 + [('d', 18)] * 4
    a.stamp()
    iteration(True)
    a.stamp()
    OW, OP, C0, PK = 112, 144, 176, 208
    a('v_mov_b32 v9, v7\n v_permlane32_swap_b32 v7, v9\n v_add_f32 v7, v7, v9\n v_rcp_f32 v7, v7')
    a(f'''s_lshl_b32 s38, s28, 13
    s_lshl_b32 s37, s29, 17
    s_add_u32 s38, s38, s37
    v_add_u32 v13, s38, v14
    s_xor_b32 s38, s38, 131072
    v_add_u32 v14, s38, v14
    s_lshl_b32 s38, s29, 14
    s_add_u32 s38, s38, {SL(17)}
    v_add_u32 v16, s38, v15
    v_xor_b32 v17, 0x4000, v16''')
    for i in range(0, 64, 2):
        a(f'v_mul_f32 v{O+i}, v7, v{O+i}\n v_mul_f32 v{O+i+1}, v7, v{O+i+1}\n v_cvt_pk_bf16_f32 v{OW+i//2}, v{O+i}, v{O+i+1}')
        if i % 8 == 6: a(f'ds_write_b128 v13, {vr(OW+i//2-3,4)} offset:{(i//8)*1024}')
    def pre_o(st):
        a.wvm(('d', 17+st)); a('s_waitcnt lgkmcnt(0)\n s_barrier')
        if st in (0, 8): a.stamp()
        if st > 0:
            for r in (16, 17): a(f'v_add_u32 v{r}, {(SL(17+st)-SL(16+st)) & 0xffffffff}, v{r}')
        if st == 1: pend.extend(loads(20))
        if 1 <= st <= 5: pend.extend(loads(20 + st))
    def outp(st):
        C = C0 + 16*(st & 1); K = PK + 8*(st & 1)
        L = [(f'v_cvt_pk_bf16_f32 v{K+i}, v{C+2*i}, v{C+2*i+1}', None) for i in range(8)]
        L.insert(4, (f's_add_u32 s46, s33, {st*1024}\n buffer_store_dwordx4 {vr(K,4)}, v2, s[20:23], s46 offen ' + STA, 'st'))
        return L + [(f'buffer_store_dwordx4 {vr(K+4,4)}, v2, s[20:23], s46 offen offset:256 ' + STA, 'st')]
    def ex_o(st, j):
        L = []
        if st == 0 and j == 0: L += [(f'ds_read_b128 {vr(OP+4*i,4)}, v14 offset:{1024*i}', 'op') for i in range(8)]
        if st > 0 and 3 <= j < 8: L += outp(st-1)[2*(j-3):2*(j-3)+2]
        if pend and j % 2 == 0 and (j >= 8 or j < 3 or st < 3): L.append(pend.pop(0))
        return L
    gemm_phase(a, 9, 16,
        lambda st, j, b: [f'ds_read_b64_tr_b16 {vr(b+2*t,2)}, v{16+(j>>3)} offset:{(16*(j&7)+8*t)*128}' for t in range(2)],
        lambda st, j, b: mf(C0+16*(st&1), b, (OW if j < 8 else OP)+4*(j&7), '0' if j == 0 else None),
        [32, 36, 40, 44, 48, 52], 4, pre_o, ex_o)
    assert not pend
    for t in outp(8): a(*t)
    if FUSE & 1: a.stamp(); tail(a, 3)
    a.dump(0x7000000, 20)
    a('s_endpgm')
    a(f'''att_sw:
    s_cmp_eq_u32 s27, 4
    s_cselect_b32 s38, {8*16384}, 0
    s_sub_u32 s43, s43, s38
    s_cmp_eq_u32 s27, 5
    s_cbranch_scc0 att_swb
    v_mov_b32 v4, v6
    v_mov_b32 v5, v6
    s_mov_b64 s[8:9], s[16:17]
    s_mov_b64 s[10:11], s[18:19]
    s_mov_b64 s[12:13], s[16:17]
    s_mov_b64 s[14:15], s[18:19]
    s_mov_b32 s42, s36
    s_add_u32 s43, s36, {128*1152}
    s_mov_b32 s46, {64*1152}
    s_movk_i32 s47, 128
    s_branch att_swb''')
    for l1, l2, Sn in rare:
        a(f'''{l1}:
        s_nop 11
        v_mov_b32 v9, v8
        v_permlane32_swap_b32 v8, v9
        v_max3_f32 v8, v8, v9, 0
        v_sub_f32 v9, 0, v8
        v_exp_f32 v9, v9''')
        for i in range(16): a(f'v_sub_f32 v{Sn+i}, v{Sn+i}, v8\n v_sub_f32 v{NM+i}, v{NM+i}, v8')
        for i in range(64): a(f'v_mul_f32 v{O+i}, v9, v{O+i}')
        a(f'v_mul_f32 v7, v9, v7\n s_nop 1\n s_branch {l2}')
    return a, 256, 256, 512, 163840
SF = lambda i: 36864 * (i % 4)
def k_ffn():
    global mf
    if os.environ.get('FAKE16'): mf = mf16
    a = Asm(); a.stamp(); guard(a, 256)
    if os.environ.get('NOLOC'): a('s_lshr_b32 s25, s2, 4\n s_and_b32 s26, s2, 15\n s_lshl_b32 s26, s26, 4\n s_or_b32 s2, s25, s26')
    srd(a, 4, 48, 576*9216); srd(a, 12, 48, 576*9216); srd(a, 8, 56, 576*9216); srd(a, 16, 64, 4608*1152); srd(a, 20, 104, WS_SZ)
    lanebits(a)
    a(f'''s_and_b32 s25, s2, 7
    s_bfe_u32 s26, s2, 0x10003
    s_lshl_b32 s26, s26, 3
    s_add_u32 s25, s25, s26
    s_lshr_b32 s26, s2, 4
    s_and_b32 s28, s24, 3
    s_lshr_b32 s29, s24, 2
    s_mul_i32 s30, s24, 4608
    s_lshl_b32 s31, s26, 2
    s_add_u32 s31, s31, s28
    s_mul_i32 s31, s31, 36864
    s_add_u32 s32, s31, {WS_H2}
    s_mul_i32 s33, s25, {PSZ}
    s_add_u32 s33, s33, s31
    s_lshl_b32 s34, s29, 9
    s_add_u32 s33, s33, s34
    s_add_u32 s33, s33, {WS_PB}
    s_mul_i32 s34, s25, 576
    s_mul_i32 s35, s28, {8*9216}
    s_add_u32 s34, s34, s35
    s_mul_i32 s36, s25, {288*1152}
    s_mul_i32 s35, s24, {36*1152}
    s_add_u32 s36, s36, s35
    s_lshl_b32 s37, s29, 1''')
    for q in range(5):
        a(f'''v_add_u32 v13, {64*q}, v1
        v_mul_u32_u24 v14, 1821, v13
        v_lshrrev_b32 v14, 16, v14
        v_mul_u32_u24 v15, 36, v14
        v_sub_u32 v13, v13, v15
        v_xor_b32 v13, s37, v13
        v_mul_u32_u24 v{3+q}, 9216, v14
        v_lshl_add_u32 v{3+q}, v13, 4, v{3+q}''')
        if 0 < q < 4: a(f'v_subrev_u32 v{3+q}, {1024*q}, v{3+q}')
    a(f'''; vDd -> v19
    v_lshrrev_b32 v13, 3, v1
    v_mul_u32_u24 v19, 1152, v13
    v_bfe_u32 v13, v1, 2, 1
    v_xor_b32 v13, v13, v10
    v_lshl_add_u32 v19, v13, 6, v19
    v_lshl_add_u32 v19, v11, 4, v19
    ; aG -> v16
    v_lshl_add_u32 v13, v8, 3, v9
    v_mul_u32_u24 v16, 576, v13
    v_lshl_add_u32 v16, v11, 3, v16
    v_mul_u32_u24 v13, 18432, v10
    v_add_u32 v16, v16, v13
    v_xor_b32 v13, s29, v10
    v_lshl_add_u32 v16, v13, 5, v16
    v_lshl_add_u32 v13, v8, 2, v9
    v_lshlrev_b32 v17, 7, v13
    v_lshrrev_b32 v13, 1, v9
    v_xor_b32 v13, s29, v13
    v_lshl_add_u32 v17, v13, 6, v17
    v_lshl_add_u32 v17, v10, 5, v17
    v_lshl_add_u32 v17, v12, 3, v17
    s_lshl_b32 s38, s29, 11
    v_add_u32 v17, s38, v17
    v_xor_b32 v18, 0x800, v17
    v_add_u32 v17, {SF(18)}, v17
    v_add_u32 v18, {SF(18)}, v18
    v_lshlrev_b32 v13, 4, v1
    s_mul_i32 s38, s24, 9216
    v_add_u32 v20, s38, v13
    s_xor_b32 s38, s24, 4
    s_mul_i32 s38, s38, 9216
    v_add_u32 v21, s38, v13
    v_mov_b32 v22, 0xc0135761
    s_mov_b32 s39, 0xbdd2d3e8
    s_waitcnt lgkmcnt(0)
    s_cmp_eq_u32 s29, 0
    s_cselect_b32 s4, s4, s8
    s_cselect_b32 s5, s5, s9''')
    ACC, HR = 112, 64
    half = lambda t: f's_mov_b32 exec_hi, 0\n {t}\n s_mov_b32 exec_hi, -1'
    def loads(idx):
        tg = ('d', idx)
        if idx < 18:
            L = [(f's_add_u32 m0, s30, {SF(idx)}\n s_add_u32 s38, s34, {idx*32*9216}\n ' + dma(3, 4, 's38'), tg)]
            L += [(dma(3+q, 4, 's38').replace(' lds', f' offset:{1024*q} lds'), tg) for q in range(1, 4)]
            L += [(f's_add_u32 m0, m0, 4096\n ' + half(dma(7, 4, 's38')), tg)]
            L += [(f's_add_u32 s40, s32, {idx*512}\n buffer_load_dwordx4 {vr(HR+8*(idx%4),4)}, v2, s[20:23], s40 offen', tg)]
            L += [(f'buffer_load_dwordx4 {vr(HR+8*(idx%4)+4,4)}, v2, s[20:23], s40 offen offset:256', tg)]
            return L
        L = []
        for q in range(5):
            d = dma(19, 16, 's38')
            L += [(f's_add_u32 m0, s30, {SF(idx)+1024*q}\n s_add_u32 s38, s36, {q*8*1152+(idx-18)*128}\n ' + (half(d) if q == 4 else d), tg)]
        return L
    for idx in range(3):
        for t in loads(idx): a(*t)
    def prefetch():
        a(f'''v_mul_u32_u24 v28, 13108, v0
        v_lshrrev_b32 v28, 16, v28
        v_mul_u32_u24 v29, 5, v28
        v_sub_u32 v29, v0, v29
        v_mul_u32_u24 v28, 9216, v28
        v_lshl_add_u32 v28, v29, 7, v28
        s_mul_i32 s37, s26, {36*9216}
        s_mul_i32 s38, s25, 576
        s_add_u32 s37, s37, s38
        s_and_b32 s37, s37, 0xffffff80
        v_cmp_gt_u32 vcc, 0xb4, v0
        s_and_saveexec_b64 s[40:41], vcc
        s_cbranch_execz pf_d
        buffer_load_dword v31, v28, s[12:15], s37 offen
        buffer_load_dword v31, v28, s[8:11], s37 offen
        s_branch pf_done
        pf_d:
        s_mov_b64 exec, s[40:41]
        v_subrev_u32 v29, 192, v0
        v_min_u32 v29, 161, v29
        v_lshlrev_b32 v29, 7, v29
        s_mul_i32 s37, s25, {288*1152}
        s_mul_i32 s38, s26, {18*1152}
        s_add_u32 s37, s37, s38
        s_cmp_lt_u32 s24, 6
        s_cbranch_scc0 pf_done
        buffer_load_dword v31, v29, s[16:19], s37 offen
        pf_done:
        s_mov_b64 exec, s[40:41]''')
        del a.vm[-3:]
    pend = []
    def pre_g(st):
        a.wvm(('d', st)); a('s_waitcnt lgkmcnt(0)\n s_barrier')
        if st in (0, 1, 4, 10, 17): a.stamp()
        if st == 0 and os.environ.get('L2PF'): prefetch()
        if st > 0: a(f'v_add_u32 v16, {(SF(st)-SF(st-1)) & 0xffffffff}, v16')
        if st + 3 < 20: pend.extend(loads(st + 3))
    HW, HP, C0, PK = 64, 112, 160, 192
    def geglu(i):
        A = ACC + 16*i
        for r in range(0, 8, 2):
            T = [24, 25]
            for k in range(2): a(f'v_mul_f32 v{T[k]}, v{A+r+k}, v{A+r+k}')
            for k in range(2): a(f'v_fma_f32 v{T[k]}, v{T[k]}, s39, v22')
            for k in range(2): a(f'v_mul_f32 v{T[k]}, v{T[k]}, v{A+r+k}')
            for k in range(2): a(f'v_exp_f32 v{T[k]}, v{T[k]}')
            for k in range(2): a(f'v_mul_f32 v{A+r+k}, v{A+r+k}, v{A+r+k+8}')
            for k in range(2): a(f'v_add_f32 v{T[k]}, 1.0, v{T[k]}')
            for k in range(2): a(f'v_rcp_f32 v{T[k]}, v{T[k]}')
            a('s_nop 0')
            for k in range(2): a(f'v_mul_f32 v{A+r+k}, v{A+r+k}, v{T[k]}')
            a(f'v_cvt_pk_bf16_f32 v{HX[i]+r//2}, v{A+r}, v{A+r+1}')
    HX = [80, 84, 88, 92, 96, 100, 104, 64, 68]
    wr = lambda i: a(f'ds_write_b128 v20, {vr(HX[i],4)} offset:{1024*i}')
    def ex(st, j):
        if st == 17 and j >= 11:
            geglu(j - 11)
            if j == 14:
                a('s_waitcnt lgkmcnt(0)\n s_barrier')
                for i in range(4): wr(i)
            if j > 14: wr(j - 11)
        return [pend.pop(0)] if pend and j % 2 else []
    gemm_phase(a, 18, 18,
        lambda st, j, b: [f'ds_read_b64_tr_b16 {vr(b+2*t,2)}, v16 offset:{64*(j%9)+(16*(j//9)+4*t)*576}' for t in range(2)],
        lambda st, j, b: mf(ACC+16*(j%9), b, HR+8*(st%4)+4*(j//9), '0' if st == 0 and j < 9 else None),
        [32, 36, 40, 44, 48, 52], 4, pre_g, ex)
    assert not pend
    for i in (7, 8): geglu(i); wr(i)
    def pre_d(st):
        a.wvm(('d', 18+st)); a('s_waitcnt lgkmcnt(0)\n s_barrier')
        if st in (0, 1, 2, 4, 8): a.stamp()
        if st > 0:
            for r in (17, 18): a(f'v_add_u32 v{r}, {(SF(18+st)-SF(17+st)) & 0xffffffff}, v{r}')
        if 1 <= st <= 5: pend.extend(loads(21 + st))
    def outp(st):
        C = C0 + 16*(st & 1); K = PK + 8*(st & 1)
        L = [(f'v_cvt_pk_bf16_f32 v{K+i}, v{C+2*i}, v{C+2*i+1}', None) for i in range(8)]
        L.insert(4, (f's_add_u32 s46, s33, {st*1024}\n buffer_store_dwordx4 {vr(K,4)}, v2, s[20:23], s46 offen ' + STB, 'st'))
        return L + [(f'buffer_store_dwordx4 {vr(K+4,4)}, v2, s[20:23], s46 offen offset:256 ' + STB, 'st')]
    def ex_d(st, j):
        L = []
        if st == 0 and j == 0: L += [(f'ds_read_b128 {vr(HP+4*i,4)}, v21 offset:{1024*i}', 'op') for i in range(9)]
        if st == 0 and j == 5: a('s_barrier'); pend.extend(loads(20) + loads(21))
        if st > 0 and 3 <= j < 8: L += outp(st-1)[2*(j-3):2*(j-3)+2]
        if pend and (st == 0 or (j % 2 == 0 and (j >= 8 or j < 3))): L.append(pend.pop(0))
        return L
    gemm_phase(a, 9, 18,
        lambda st, j, b: [f'ds_read_b64_tr_b16 {vr(b+2*t,2)}, v{17+j//9} offset:{4096*(j%9)+1024*t}' for t in range(2)],
        lambda st, j, b: mf(C0+16*(st&1), b, HX[j] if j < 9 else HP+4*(j-9), '0' if j == 0 else None),
        [32, 36, 40, 44, 48, 52], 4, pre_d, ex_d)
    assert not pend
    for t in outp(8): a(*t)
    if FUSE & 2: a.stamp(); tail(a, 5)
    a.dump(0x7100000, 20)
    a('s_endpgm')
    return a, 256, 256, 512, 147456
```

```python
from asm import *
import os
WS_MOD, WS_H, WS_X1, WS_H2, WS_PA, WS_PB, PSZ = 0, 0x10000, 0x300000, 0x600000, 0x1000000, 0x4000000, 2359296
WS_SZ = 0x8000000
def srd(a, d, koff, nbytes):
    a(f's_load_dwordx2 s[{d}:{d+1}], s[0:1], {koff}\n s_mov_b32 s{d+2}, {nbytes}\n s_mov_b32 s{d+3}, 0x00020000')
def guard(a, n):
    l = a.label('go')
    a(f's_cmp_lt_u32 s2, {n}\n s_cbranch_scc1 {l}\n s_endpgm\n {l}:')
def unpack(a, d, s, n):
    for i in range(n):
        a(f'v_lshlrev_b32 v{d+2*i}, 16, v{s+i}\n v_and_b32 v{d+2*i+1}, 0xffff0000, v{s+i}')
def k_mod(a):
    srd(a, 4, 72, 1152); srd(a, 8, 80, 576*6912); srd(a, 12, 104, WS_SZ); srd(a, 20, 96, 256)
    a('''v_lshrrev_b32 v1, 3, v0
    v_and_b32 v2, 7, v0
    v_lshlrev_b32 v3, 4, v1
    s_mov_b32 s16, 55296
    v_mul_lo_u32 v4, v1, s16
    v_lshl_add_u32 v4, v2, 4, v4
    s_lshl_b32 s17, s2, 7
    s_waitcnt lgkmcnt(0)
    buffer_load_dwordx4 v[8:11], v3, s[4:7], 0 offen''')
    for j in range(8):
        a(f'buffer_load_dwordx4 v[{16+4*j}:{19+4*j}], v4, s[8:11], s17 offen\n s_add_u32 s17, s17, 6912')
    a('s_waitcnt vmcnt(8)')
    unpack(a, 48, 8, 4)
    for j in range(8):
        a(f'v_mul_f32 v{56+j}, 0xbfb8aa3b, v{48+j}\n v_exp_f32 v{56+j}, v{56+j}\n v_add_f32 v{56+j}, 1.0, v{56+j}\n v_rcp_f32 v{56+j}, v{56+j}\n v_mul_f32 v{48+j}, v{48+j}, v{56+j}')
    for j in range(4): a(f'v_cvt_pk_bf16_f32 v{8+j}, v{48+2*j}, v{49+2*j}')
    unpack(a, 48, 8, 4)
    for j in range(8):
        a(f's_waitcnt vmcnt({7-j})')
        unpack(a, 56, 16+4*j, 4)
        for c in range(8):
            a(f'v_mul_f32 v{64+c}, v{48+j}, v{56+c}' if j == 0 else f'v_fmac_f32 v{64+c}, v{48+j}, v{56+c}')
    a('''v_lshlrev_b32 v5, 5, v0
    ds_write_b128 v5, v[64:67]
    ds_write_b128 v5, v[68:71] offset:16
    v_and_b32 v6, 63, v0
    v_lshrrev_b32 v7, 6, v0
    v_lshlrev_b32 v6, 2, v6
    v_lshl_add_u32 v7, v7, 11, v6
    s_waitcnt lgkmcnt(0)
    s_barrier''')
    for i in range(8): a(f'ds_read_b32 v{16+i}, v7 offset:{256*i}')
    a('s_waitcnt lgkmcnt(0)')
    for i in range(1, 8): a(f'v_add_f32 v16, v16, v{16+i}')
    a('''v_lshlrev_b32 v5, 2, v0
    ds_write_b32 v5, v16 offset:18432
    s_waitcnt lgkmcnt(0)
    s_barrier
    v_readfirstlane_b32 s18, v0
    s_cmp_lt_u32 s18, 64
    s_cbranch_scc1 kmod_fin
    s_endpgm
    kmod_fin:''')
    for i in range(9): a(f'ds_read_b32 v{16+i}, v6 offset:{18432+256*i}')
    a('s_waitcnt lgkmcnt(0)')
    for i in range(1, 9): a(f'v_add_f32 v16, v16, v{16+i}')
    a('''v_cvt_pk_bf16_f32 v16, v16, v16
    v_lshlrev_b32 v16, 16, v16
    s_sub_u32 s19, s2, 9
    s_cmp_lt_u32 s19, 9
    s_cselect_b32 s24, 1.0, 0
    s_sub_u32 s19, s2, 36
    s_cmp_lt_u32 s19, 9
    s_cselect_b32 s24, 1.0, s24
    v_add_f32 v16, s24, v16
    v_cvt_pk_bf16_f32 v16, v16, v16
    v_lshlrev_b32 v16, 16, v16
    s_lshl_b32 s17, s2, 8
    buffer_store_dword v16, v6, s[12:15], s17 offen
    s_cmp_lt_u32 s2, 18
    s_cbranch_scc0 kmod_end
    s_cmp_lt_u32 s2, 9
    s_cselect_b32 s17, 32, 0
    s_cselect_b32 s18, 0, 9
    s_sub_u32 s18, s2, s18
    s_lshl_b32 s18, s18, 9
    s_add_u32 s17, s17, s18
    s_add_u32 s17, s17, 0x4000
    v_lshrrev_b32 v1, 3, v0
    v_and_b32 v2, 7, v0
    v_lshlrev_b32 v2, 2, v2
    v_lshl_add_u32 v1, v1, 6, v2
    buffer_store_dword v16, v1, s[12:15], s17 offen
    kmod_end:
    s_endpgm''')
def rowsum(a, v, t, ldsoff):
    a(f'''v_add_f32_dpp v{v}, v{v}, v{v} row_ror:8 row_mask:0xf bank_mask:0xf
    ds_swizzle_b32 v{t}, v{v} offset:0x401F
    s_waitcnt lgkmcnt(0)
    v_add_f32 v{v}, v{v}, v{t}
    v_mov_b32 v{t}, v{v}
    v_permlane32_swap_b32 v{v}, v{t}
    v_add_f32 v{v}, v{v}, v{t}
    ds_write_b32 v3, v{v} offset:{ldsoff}
    s_waitcnt lgkmcnt(0)
    s_barrier
    ds_read_b128 v[{t}:{t+3}], v2 offset:{ldsoff}
    ds_read_b128 v[{t+4}:{t+7}], v2 offset:{ldsoff+16}
    ds_read_b32 v{v}, v2 offset:{ldsoff+32}
    s_waitcnt lgkmcnt(0)''')
    for i in range(0, 8, 2): a(f'v_add_f32 v{t+i}, v{t+i}, v{t+i+1}')
    a(f'v_add_f32 v{t}, v{t}, v{t+2}\n v_add_f32 v{t+4}, v{t+4}, v{t+6}\n v_add_f32 v{v}, v{v}, v{t}\n v_add_f32 v{v}, v{v}, v{t+4}')
PFM = os.environ.get('PFM', 'early')
def warm(a):
        a(f'''v_lshlrev_b32 v50, 7, v0
        v_cmp_gt_u32 vcc, 0x90, v0
        s_and_saveexec_b64 s[40:41], vcc
        s_cbranch_execz pf_kv
        s_mul_i32 s17, s2, {144*128}
        buffer_load_dword v51, v50, s[24:27], s17 offen
        s_mov_b64 exec, s[40:41]
        s_waitcnt vmcnt(1)
        s_branch pf_end
        pf_kv:
        s_mov_b64 exec, s[40:41]
        v_readfirstlane_b32 s18, v0
        s_branch pf_done
        v_and_b32 v50, 63, v0
        v_lshlrev_b32 v50, 7, v50
        s_lshr_b32 s17, s2, 4
        s_lshl_b32 s17, s17, 19
        s_and_b32 s18, s2, 15
        s_lshl_b32 s18, s18, 13
        s_add_u32 s17, s17, s18
        s_add_u32 s17, s17, {1536*256}
        buffer_load_dword v51, v50, s[28:31], s17 offen
        buffer_load_dword v51, v50, s[32:35], s17 offen
        s_waitcnt vmcnt(2)
        s_branch pf_end
        pf_done:
        s_waitcnt vmcnt(0)
        pf_end:''')
def k_ln(mode):
    a = Asm()
    if mode == 1:
        a('s_cmp_lt_u32 s2, 54\n s_cbranch_scc0 ln1')
        k_mod(a)
        a('ln1:\n s_cmp_eq_u32 s2, 54\n s_cbranch_scc0 ln1b')
        srd(a, 12, 104, WS_SZ)
        a('v_lshlrev_b32 v1, 8, v0\n v_mov_b32 v2, 0\n v_cmp_gt_u32 vcc, 48, v0\n s_and_saveexec_b64 s[40:41], vcc\n s_mov_b32 s17, 0x8000\n s_waitcnt lgkmcnt(0)\n buffer_store_dword v2, v1, s[12:15], s17 offen\n s_endpgm')
        a('ln1b:\n s_sub_u32 s2, s2, 56')
        srd(a, 20, 96, 256); srd(a, 24, 24, 576*8192); srd(a, 28, 8, 16*524288); srd(a, 32, 16, 16*524288); srd(a, 36, 32, 4096*1152)
    guard(a, 256)
    srd(a, 4, 0, PSZ); srd(a, 12, 104, WS_SZ); srd(a, 8, 88, PSZ)
    a('''v_lshlrev_b32 v1, 4, v0
    v_and_b32 v2, 7, v0
    v_lshrrev_b32 v5, 3, v0
    s_movk_i32 s16, 1152
    v_mul_lo_u32 v4, v2, s16
    v_lshl_add_u32 v4, v5, 4, v4
    v_lshlrev_b32 v5, 5, v5
    v_lshlrev_b32 v2, 6, v2
    v_lshrrev_b32 v3, 6, v0
    v_lshl_add_u32 v3, v3, 2, v2
    s_mul_i32 s16, s2, 9216
    s_waitcnt lgkmcnt(0)''')
    X, M, P, A, T = (8, 16, 48, 112, 120) if mode != 1 else (8, 16, 12, 32, 40)
    if mode == 5:
        a(f's_add_u32 s17, s16, {WS_X1}\n buffer_load_dwordx4 v[{X}:{X+3}], v1, s[12:15], s17 offen', 'x')
    else:
        a(f'buffer_load_dwordx4 v[{X}:{X+3}], v4, s[4:7], s16 offen', 'x')
    if mode != 1:
        a(f's_add_u32 s17, s16, {WS_PA if mode == 3 else WS_PB}')
        for p in range(16):
            a(f'buffer_load_dwordx4 v[{P+4*p}:{P+4*p+3}], v1, s[12:15], s17 offen', f'p{p}')
            if p < 15: a(f's_add_u32 s17, s17, {PSZ}')
    segs = {1: [0, 1], 3: [2, 3, 4], 5: [5]}[mode]
    def modloads(fl=''):
      for i, sg in enumerate(segs):
        a(f's_movk_i32 s18, {sg*2304}\n buffer_load_dwordx4 v[{M+8*i}:{M+8*i+3}], v5, s[12:15], s18 offen {fl}\n buffer_load_dwordx4 v[{M+8*i+4}:{M+8*i+7}], v5, s[12:15], s18 offen offset:16 {fl}', 'm')
    if mode != 1: modloads()
    if mode != 1:
        for p in range(16):
            a.wvm(f'p{p}')
            if p == 0: unpack(a, A, P, 4)
            else:
                unpack(a, T, P+4*p, 4)
                for c in range(8): a(f'v_add_f32 v{A+c}, v{A+c}, v{T+c}')
        a.wvm('m')
        unpack(a, T, X, 4)
        for c in range(8): a(f'v_fma_f32 v{A+c}, v{A+c}, v{M+c}, v{T+c}')
        for c in range(4): a(f'v_cvt_pk_bf16_f32 v{X+c}, v{A+2*c}, v{A+2*c+1}')
        if mode == 5:
            a(f'buffer_store_dwordx4 v[{X}:{X+3}], v4, s[8:11], s16 offen\n s_endpgm')
            return a, 136, 256, 576, 0
        a(f's_add_u32 s17, s16, {WS_X1}\n buffer_store_dwordx4 v[{X}:{X+3}], v1, s[12:15], s17 offen')
        M += 8
    else:
        if PFM == 'early': warm(a)
        else: a.wvm('x')
    unpack(a, A, X, 4)
    S = 6
    a(f'v_add_f32 v{S}, v{A}, v{A+1}')
    for c in range(2, 8): a(f'v_add_f32 v{S}, v{S}, v{A+c}')
    rowsum(a, S, T, 0)
    a(f'v_mul_f32 v{S}, 0x3ae38e39, v{S}')
    for c in range(8): a(f'v_sub_f32 v{A+c}, v{A+c}, v{S}')
    a(f'v_mul_f32 v{S}, v{A}, v{A}')
    for c in range(1, 8): a(f'v_fmac_f32 v{S}, v{A+c}, v{A+c}')
    rowsum(a, S, T, 512)
    a(f'v_mov_b32 v7, 0x3727c5ac\n v_fmac_f32 v7, 0x3ae38e39, v{S}\n v_rsq_f32 v7, v7')
    if mode == 1:
        for c in range(8): a(f'v_mul_f32 v{A+c}, v{A+c}, v7')
    else:
        a.wvm('m')
        for c in range(8): a(f'v_mul_f32 v{A+c}, v{A+c}, v7\n v_fma_f32 v{A+c}, v{A+c}, v{M+8+c}, v{M+c}')
    for c in range(4): a(f'v_cvt_pk_bf16_f32 v{P+c}, v{A+2*c}, v{A+2*c+1}')
    a(f's_add_u32 s17, s16, {WS_H if mode == 1 else WS_H2}\n buffer_store_dwordx4 v[{P}:{P+3}], v1, s[12:15], s17 offen\n s_endpgm')
    return (a, 136, 256, 576, 1024) if mode != 1 else (a, 72, 312, 576, 18432+2304)
def gbar(a, nm, off):
    a('s_waitcnt vmcnt(0)\n s_barrier')
    a.stamp()
    a(f'''s_cmp_eq_u32 s24, 0
    s_cbranch_scc0 {nm}_d
    s_lshl_b32 s17, s26, 8
    s_add_u32 s17, s17, {0x8000 + 4096*off}
    s_mov_b32 s18, 0x40000
    v_mov_b32 v6, 1
    v_mov_b32 v7, 0
    s_mov_b64 exec, 1
    buffer_atomic_add v6, v7, s[20:23], s17 offen sc1
    {nm}_p:
    buffer_load_dword v6, v7, s[20:23], s17 offen sc1
    s_waitcnt vmcnt(0)
    v_readfirstlane_b32 s19, v6
    s_sub_u32 s18, s18, 1
    s_cbranch_scc1 {nm}_x
    s_cmp_ge_u32 s19, 16
    s_cbranch_scc1 {nm}_x
    s_sleep {os.environ.get('SLP', 4)}
    s_branch {nm}_p
    {nm}_x:
    s_mov_b64 exec, -1
    {nm}_d:
    s_barrier''')
def tail(a, mode, fl=''):
    srd(a, 4, 0, PSZ); srd(a, 8, 88, PSZ)
    X, M, P, A, T, XE, ME, PE = 8, 16, 48, 112, 124, 12, 40, 140
    a(f'''v_mbcnt_lo_u32_b32 v0, -1, 0
    v_mbcnt_hi_u32_b32 v0, -1, v0
    s_lshl_b32 s16, s24, 6
    v_add_u32 v0, s16, v0
    v_lshlrev_b32 v1, 4, v0
    v_and_b32 v2, 7, v0
    v_lshrrev_b32 v5, 3, v0
    v_mul_u32_u24 v4, 1152, v2
    v_lshl_add_u32 v158, v5, 2, v4
    v_add_u32 v158, 1024, v158
    v_lshl_add_u32 v4, v5, 4, v4
    v_lshlrev_b32 v159, 3, v5
    v_add_u32 v159, 2048, v159
    v_and_b32 v157, 3, v5
    v_lshlrev_b32 v157, 2, v157
    v_lshl_add_u32 v157, v2, 4, v157
    v_lshrrev_b32 v3, 5, v0
    v_lshl_add_u32 v157, v3, 7, v157
    v_add_u32 v157, 8192, v157
    v_lshlrev_b32 v5, 5, v5
    v_lshlrev_b32 v2, 6, v2
    s_lshl_b32 s17, s24, 2
    v_add_u32 v3, s17, v2
    s_lshl_b32 s16, s26, 4
    s_add_u32 s16, s16, s25
    s_mul_i32 s16, s16, 9216
    s_cmp_lt_u32 s24, 4
    s_cselect_b32 s44, 1.0, 0
    s_cselect_b64 s[40:41], -1, 0
    v_mov_b32 v{XE}, 0''')
    for i in range(16): a(f'v_mov_b32 v{PE+i}, 0')
    segs = {3: [2, 3, 4], 5: [5]}[mode]
    for i in range(2*len(segs)): a(f'v_mov_b32 v{ME+i}, 0')
    a(f's_waitcnt lgkmcnt(0)\n s_add_u32 s17, s16, {WS_X1}\n s_mov_b64 exec, s[40:41]')
    xs = 'v157, s[20:23], s17' if mode == 5 else 'v158, s[4:7], s16'
    a(f'buffer_load_dword v{XE}, {xs} offen {fl if mode == 5 else ""}')
    for i, sg in enumerate(segs): a(f's_movk_i32 s18, {sg*2304}\n buffer_load_dwordx2 v[{ME+2*i}:{ME+2*i+1}], v159, s[20:23], s18 offen')
    a('s_mov_b64 exec, -1')
    xs = 'v1, s[20:23], s17' if mode == 5 else 'v4, s[4:7], s16'
    a(f'buffer_load_dwordx4 v[{X}:{X+3}], {xs} offen {fl if mode == 5 else ""}')
    for i, sg in enumerate(segs):
        a(f's_movk_i32 s18, {sg*2304}\n buffer_load_dwordx4 v[{M+8*i}:{M+8*i+3}], v5, s[20:23], s18 offen\n buffer_load_dwordx4 v[{M+8*i+4}:{M+8*i+7}], v5, s[20:23], s18 offen offset:16')
    gbar(a, f'gb{mode}', 0 if mode == 3 else 1)
    a.stamp()
    base = WS_PA if mode == 3 else WS_PB
    a('s_mov_b64 exec, s[40:41]')
    for p in range(16): a(f's_add_u32 s17, s16, {base+p*PSZ}\n buffer_load_dword v{PE+p}, v157, s[20:23], s17 offen sc1')
    a('s_mov_b64 exec, -1')
    for p in range(16): a(f's_add_u32 s17, s16, {base+p*PSZ}\n buffer_load_dwordx4 v[{P+4*p}:{P+4*p+3}], v1, s[20:23], s17 offen sc1', f'p{p}')
    for p in range(16):
        a.wvm(f'p{p}')
        if p == 0: unpack(a, A, P, 4); unpack(a, A+8, PE, 1)
        else:
            unpack(a, T, P+4*p, 4); unpack(a, T+8, PE+p, 1)
            for c in range(10): a(f'v_add_f32 v{A+c}, v{A+c}, v{T+c}')
    unpack(a, T, X, 4); unpack(a, T+8, XE, 1)
    mr = lambda i, c: M+8*i+c if c < 8 else ME+2*i+c-8
    for c in range(10): a(f'v_fma_f32 v{A+c}, v{A+c}, v{mr(0,c)}, v{T+c}')
    for c in range(5): a(f'v_cvt_pk_bf16_f32 v{X+c}, v{A+2*c}, v{A+2*c+1}')
    def st(R, om, oe, sd, so, f):
        a(f'buffer_store_dwordx4 v[{R}:{R+3}], v{om}, {sd}, {so} offen {f}\n s_mov_b64 exec, s[40:41]\n buffer_store_dword v{R+4}, v{oe}, {sd}, {so} offen {f}\n s_mov_b64 exec, -1')
    if mode == 5: return st(X, 4, 158, 's[8:11]', 's16', '')
    a(f's_add_u32 s17, s16, {WS_X1}'); st(X, 1, 157, 's[20:23]', 's17', fl)
    unpack(a, A, X, 5)
    S = 6
    def rs(off):
        a(f'''v_add_f32_dpp v{S}, v{S}, v{S} row_ror:8 row_mask:0xf bank_mask:0xf
        ds_swizzle_b32 v{T}, v{S} offset:0x401F
        s_waitcnt lgkmcnt(0)
        v_add_f32 v{S}, v{S}, v{T}
        v_mov_b32 v{T}, v{S}
        v_permlane32_swap_b32 v{S}, v{T}
        v_add_f32 v{S}, v{S}, v{T}
        ds_write_b32 v3, v{S} offset:{off}
        s_waitcnt lgkmcnt(0)
        s_barrier
        ds_read_b128 v[{T}:{T+3}], v2 offset:{off}
        ds_read_b128 v[{T+4}:{T+7}], v2 offset:{off+16}
        s_waitcnt lgkmcnt(0)''')
        for i in range(0, 8, 2): a(f'v_add_f32 v{T+i}, v{T+i}, v{T+i+1}')
        a(f'v_add_f32 v{T}, v{T}, v{T+2}\n v_add_f32 v{T+4}, v{T+4}, v{T+6}\n v_add_f32 v{S}, v{T}, v{T+4}')
    a(f'v_add_f32 v{S}, v{A}, v{A+1}')
    for c in range(2, 10): a(f'v_add_f32 v{S}, v{S}, v{A+c}')
    rs(0)
    a(f'v_mul_f32 v{S}, 0x3ae38e39, v{S}')
    for c in range(10): a(f'v_sub_f32 v{A+c}, v{A+c}, v{S}')
    for c in (8, 9): a(f'v_mul_f32 v{A+c}, s44, v{A+c}')
    a(f'v_mul_f32 v{S}, v{A}, v{A}')
    for c in range(1, 10): a(f'v_fmac_f32 v{S}, v{A+c}, v{A+c}')
    rs(512)
    a(f'v_mov_b32 v7, 0x3727c5ac\n v_fmac_f32 v7, 0x3ae38e39, v{S}\n v_rsq_f32 v7, v7')
    for c in range(10): a(f'v_mul_f32 v{A+c}, v{A+c}, v7\n v_fma_f32 v{A+c}, v{A+c}, v{mr(2,c)}, v{mr(1,c)}')
    for c in range(5): a(f'v_cvt_pk_bf16_f32 v{P+c}, v{A+2*c}, v{A+2*c+1}')
    a(f's_add_u32 s17, s16, {WS_H2}'); st(P, 1, 157, 's[20:23]', 's17', fl)
```

```python
from asm import *
from small import *
import os
STA, STB = os.environ.get('STA', 'sc1'), os.environ.get('STB', 'sc1')
FUSE = int(os.environ.get('FUSE', '0'))
QF, GF = int(os.environ.get('QF', 1)), int(os.environ.get('GF', 1))
MF = 'v_mfma_f32_32x32x16_bf16'
def mf(d, A, B, c=None): return f'{MF} {vr(d,16)}, {vr(A,4)}, {vr(B,4)}, ' + (vr(d,16) if c is None else c)
_p = [0]
def mf16(d, A, B, c=None):
    _p[0] ^= 1
    o = 8 * _p[0]
    M = 'v_mfma_f32_16x16x32_bf16'
    return '\n'.join(f'{M} {vr(d+o+4*i,4)}, {vr(A,4)}, {vr(B,4)}, {vr(d+o+4*i,4)}' for i in range(2))
def weave(a, mfmas, fill):
    n = len(mfmas); k = 0
    for i, m in enumerate(mfmas):
        m()
        e = (len(fill) * (i + 1) + n - 1) // n
        while k < e: a(*fill[k]); k += 1
def merge(*ls):
    it = sorted(((j + 0.5) / len(l), i, j) for i, l in enumerate(ls) for j in range(len(l)))
    return [ls[i][j] for _, i, j in it]
def dma(vo, s, soff): return f'buffer_load_dwordx4 v{vo}, s[{s}:{s+3}], {soff} offen lds'
def lanebits(a):
    a('''v_and_b32 v1, 63, v0
    v_lshrrev_b32 v8, 6, v0
    v_readfirstlane_b32 s24, v8
    v_lshrrev_b32 v8, 5, v1
    v_bfe_u32 v9, v1, 2, 2
    v_bfe_u32 v10, v1, 4, 1
    v_and_b32 v11, 3, v1
    v_lshlrev_b32 v12, 1, v11
    v_lshrrev_b32 v13, 1, v11
    v_or_b32 v12, v12, v13
    v_and_b32 v12, 3, v12
    v_bfe_u32 v13, v1, 3, 2
    v_mul_u32_u24 v2, 9216, v13
    v_lshl_add_u32 v2, v8, 7, v2
    v_and_b32 v13, 7, v1
    v_lshl_add_u32 v2, v13, 4, v2''')
    if os.environ.get('PRIO'): l = a.label('prio'); a(f's_cmp_lt_u32 s24, 4\n s_cbranch_scc1 {l}\n s_setprio 1\n {l}:')
def gemm_phase(a, nst, per, reads, mfma, ring, dist, pre_stage, extra):
    N = nst * per
    def rd(i):
        st, j = divmod(i, per)
        if j == 0: pre_stage(st)
        for t in reads(st, j, ring[i % len(ring)]): a(t, ('f', i))
    for i in range(dist): rd(i)
    for i in range(N):
        st, j = divmod(i, per)
        a.wlg(('f', i))
        a(mfma(st, j, ring[i % len(ring)]))
        if i + dist < N: rd(i + dist)
        for t in extra(st, j): a(*t)
SL = lambda i: 32768 + 32768 * ((i - 9) % 4)
QS = lambda i: 16384 + 49152 * (i % 3)
def k_attn():
    a = Asm(); a.stamp(); guard(a, 256)
    srd(a, 4, 24, 576*8192); srd(a, 8, 8, 16*524288); srd(a, 12, 16, 16*524288); srd(a, 16, 32, 4096*1152); srd(a, 20, 104, WS_SZ)
    def early():
        lanebits(a)
        a(f'''s_and_b32 s25, s2, 7
        s_bfe_u32 s26, s2, 0x10003
        s_lshl_b32 s26, s26, 3
        s_add_u32 s25, s25, s26
        s_lshr_b32 s26, s2, 4
        s_and_b32 s28, s24, 3
        s_lshr_b32 s29, s24, 2
        s_lshl_b32 s30, s24, 10
        s_lshl_b32 s31, s26, 2
        s_add_u32 s31, s31, s28
        s_mul_i32 s31, s31, 36864
        s_add_u32 s32, s31, {WS_H}
        s_mul_i32 s33, s25, {PSZ}
        s_add_u32 s33, s33, s31
        s_lshl_b32 s34, s29, 9
        s_add_u32 s33, s33, s34
        s_add_u32 s33, s33, {WS_PA}
        s_lshl_b32 s34, s25, 9
        s_lshl_b32 s35, s25, 19
        s_add_u32 s35, s35, {1536*256}
        s_mul_i32 s36, s25, {256*1152}
        s_mul_i32 s32, s26, {16*9216}
        s_lshl_b32 s37, s24, 7
        s_add_u32 s32, s32, s37
        s_add_u32 s32, s32, {WS_H}
        s_lshl_b32 s47, s24, 6
        s_add_u32 s47, s47, 0x4000
        v_lshrrev_b32 v13, 3, v1
        v_mul_u32_u24 v253, 9216, v13
        v_and_b32 v13, 7, v1
        v_lshl_add_u32 v253, v13, 4, v253
        v_and_b32 v13, 31, v1
        v_lshlrev_b32 v252, 12, v8
        v_lshl_add_u32 v252, v13, 4, v252
        s_lshl_b32 s37, s24, 9
        s_add_u32 s37, s37, {QS(0)+32768}
        v_add_u32 v252, s37, v252
        ; vDq
        s_lshl_b32 s37, s24, 1
        v_add_u32 v13, s37, v8
        v_and_b32 v14, 3, v13
        v_bfe_u32 v15, v1, 2, 3
        v_xor_b32 v14, v14, v15
        v_lshlrev_b32 v3, 13, v13
        v_lshl_add_u32 v3, v14, 6, v3
        v_lshl_add_u32 v3, v11, 4, v3
        s_waitcnt lgkmcnt(0)''')
    def late():
        a(f'''
        s_lshl_b32 s37, s24, 2
        v_lshrrev_b32 v13, 4, v1
        v_add_u32 v14, s37, v13
        v_and_b32 v15, 15, v1
        v_xor_b32 v7, v15, v14
        v_and_b32 v7, 15, v7
        v_lshlrev_b32 v4, 8, v14
        v_lshl_add_u32 v5, v15, 4, v4
        v_lshl_add_u32 v4, v7, 4, v4
        v_lshlrev_b32 v13, 6, v13
        v_xor_b32 v5, v5, v13
        ; vDo
        s_lshl_b32 s37, s24, 3
        v_lshrrev_b32 v13, 3, v1
        v_add_u32 v13, s37, v13
        v_mul_u32_u24 v6, 1152, v13
        v_bfe_u32 v13, v1, 2, 1
        v_xor_b32 v13, v13, v10
        v_lshl_add_u32 v6, v13, 6, v6
        v_lshl_add_u32 v6, v11, 4, v6
        ; aQ[0..3] v16..19
        v_lshl_add_u32 v13, v8, 3, v9
        v_lshlrev_b32 v16, 9, v13
        s_lshl_b32 s37, s29, 2
        v_xor_b32 v13, s37, v9
        v_lshl_add_u32 v16, v13, 6, v16
        v_lshl_add_u32 v16, v10, 5, v16
        v_lshl_add_u32 v16, v12, 3, v16
        v_add_u32 v16, {QS(0)}, v16
        v_xor_b32 v17, 64, v16
        v_xor_b32 v18, 0x80, v16
        v_xor_b32 v19, 0xc0, v16
        ; aV[0..3] v20..23
        v_lshl_add_u32 v13, v8, 2, v9
        v_lshlrev_b32 v20, 8, v13
        v_lshl_add_u32 v20, v9, 6, v20
        v_lshl_add_u32 v20, v10, 5, v20
        v_lshl_add_u32 v20, v11, 3, v20
        v_add_u32 v20, {SL(8)}, v20
        v_xor_b32 v21, 64, v20
        v_xor_b32 v22, 0x80, v20
        v_xor_b32 v23, 0xc0, v20
        ; aK[0..7] v24..31
        v_and_b32 v13, 31, v1
        v_lshlrev_b32 v24, 8, v13
        v_and_b32 v13, 15, v1
        v_xor_b32 v13, v13, v8
        v_lshl_add_u32 v24, v13, 4, v24''')
        for s in range(1, 8): a(f'v_xor_b32 v{24+s}, {s<<5}, v24')
        a(f'''v_lshl_add_u32 v13, v8, 2, v9
        v_lshlrev_b32 v15, 7, v13
        v_lshrrev_b32 v13, 1, v9
        v_xor_b32 v13, s29, v13
        v_lshl_add_u32 v15, v13, 6, v15
        v_lshl_add_u32 v15, v10, 5, v15
        v_lshl_add_u32 v15, v12, 3, v15
        v_lshlrev_b32 v14, 4, v1
        s_lshl_b32 s37, s28, 12
        s_add_u32 s37, s37, {QS(0)+32768}
        v_add_u32 v13, s37, v14''')
    def prefetch():
        a(f'''v_lshrrev_b32 v252, 2, v0
        v_lshlrev_b32 v252, 13, v252
        v_lshl_add_u32 v252, v11, 7, v252
        v_lshlrev_b32 v253, 7, v0
        s_mul_i32 s37, s26, {36*8192}
        s_add_u32 s37, s37, s34
        s_mul_i32 s38, s26, {16*1152}
        s_add_u32 s38, s38, s36
        v_cmp_gt_u32 vcc, 0x90, v0
        s_and_saveexec_b64 s[40:41], vcc
        s_cbranch_execz pf_kv
        buffer_load_dword v254, v252, s[4:7], s37 offen
        buffer_load_dword v254, v253, s[16:19], s38 offen
        s_branch pf_done
        pf_kv:
        s_mov_b64 exec, s[40:41]
        s_lshl_b32 s37, s26, 13
        s_add_u32 s37, s37, s35
        v_lshlrev_b32 v253, 7, v1
        s_cmp_eq_u32 s24, 3
        s_cbranch_scc0 pf_done
        buffer_load_dword v254, v253, s[12:15], s37 offen
        buffer_load_dword v254, v253, s[8:11], s37 offen
        pf_done:
        s_mov_b64 exec, s[40:41]''')
        del a.vm[-4:]
    HB, AQ, QP = 112, 48, 224
    def piece(vo, sd, m0, soff_reg, soff_add, tag):
        return [(f's_add_u32 m0, s30, {m0}\n s_add_u32 s38, {soff_reg}, {soff_add}\n ' + dma(vo, sd, 's38'), tag)]
    XR, XT, XS = 136, 160, 168
    xl = lambda j, tag: [(f's_add_u32 s38, s32, {j*1024+u*8*9216}\n buffer_load_dwordx4 {vr(XR+8*(j%3)+4*u,4)}, v253, s[20:23], s38 offen', tag) for u in range(2)]
    cl = lambda j, sb: f's_add_u32 s46, s47, {j*512}\n s_load_dwordx16 s[{sb}:{sb+15}], s[20:21], s46'
    def modulate(j):
        sb = 64 if j & 1 else 84
        L = [cl(j + 1, 84 if j & 1 else 64)] if 1 <= j < 8 else []
        L += [f'v_mov_b32 v{XS+i}, s{sb+8+i}' for i in range(8)]
        if j: L.append(f'v_add_u32 v252, {(QS(j)-QS(j-1)) & 0xffffffff}, v252')
        for u in range(2):
            X = XR + 8*(j % 3) + 4*u
            if os.environ.get('DOT'):
                L += [f'v_dot2_f32_bf16 v{XT+i}, v{X+i//2}, s{sb+i}, v{XS+i}' for i in range(8)]
                L += [f'v_cvt_pk_bf16_f32 v{X+i}, v{XT+2*i}, v{XT+2*i+1}' for i in range(4)]
            else:
              for i in range(4):
                L += [f'v_lshlrev_b32 v{XT+2*i}, 16, v{X+i}', f'v_and_b32 v{XT+2*i+1}, 0xffff0000, v{X+i}']
                L += [f'v_fma_f32 v{XT+2*i+k}, v{XT+2*i+k}, s{sb+2*i+k}, v{XS+2*i+k}' for k in range(2)]
                L += [f'v_cvt_pk_bf16_f32 v{X+i}, v{XT+2*i}, v{XT+2*i+1}']
            L += [f'ds_write_b128 v252, {vr(X,4)} offset:{8192*u}']
        return [(t, None) for t in L]
    def loads(idx):
        L = []
        if idx < 9:
            if idx < 8: L += xl(idx + 1, ('d', idx))
            for q in range(4): L += piece(3, 4, QS(idx) + q*8192, 's34', idx*524288 + q*131072, ('d', idx))
        elif idx < 17:
            t = idx - 9
            for q in range(2): L += piece(5, 12, SL(idx) + q*8192, 's35', t*16384 + q*8192, ('d', idx))
            for q in range(2): L += piece(4, 8, SL(idx) + 16384 + q*8192, 's35', (t+1)*16384 + q*8192, ('d', idx))
        else:
            for q in range(4): L += piece(6, 16, SL(idx) + q*8192, 's36', q*64*1152 + (idx-17)*128, ('d', idx))
        return L
    early()
    for t in xl(0, 'x0'): a(*t)
    a(cl(0, 84)); a(cl(1, 64))
    for t in loads(0): a(*t)
    late()
    for t in loads(1): a(*t)
    a.wvm('x0'); a('s_waitcnt lgkmcnt(0)')
    for t in modulate(0): a(*t)
    mq = []
    pend = []
    k0 = sum((piece(4, 8, q*8192, 's35', q*8192, 'k0') for q in range(2)), [])
    if not QF: pend += k0
    def pre_q(st):
        while mq: a(*mq.pop(0))
        a.wvm(('d', st)); a('s_waitcnt lgkmcnt(0)\n s_barrier')
        if st in (0, 1, 4, 8): a.stamp()
        if st == 0 and os.environ.get('L2PF'): prefetch()
        if st > 0:
            for r in (13, 16, 17, 18, 19): a(f'v_add_u32 v{r}, {(QS(st)-QS(st-1)) & 0xffffffff}, v{r}')
        if QF and st == 6: pend.extend(k0)
        pend.extend(loads(st + 2))
        assert not mq
        if st < 8: mq.extend(modulate(st + 1))
    def ex(st, j): return [mq.pop(0) for _ in range(min(3 if os.environ.get('DOT') else 4, len(mq)))] + ([pend.pop(0)] if pend and (j in (13, 15, 2, 5, 7, 10) if QF else j % 2) else [])
    gemm_phase(a, 9, 16,
        lambda st, j, b: [f'ds_read_b64_tr_b16 {vr(b+2*t,2)}, v{16+(j&3)} offset:{(16*(j>>2)+4*t)*512}' for t in range(2)]
           + ([f'ds_read_b128 {vr(HB+4*(j>>2),4)}, v13 offset:{1024*(j>>2)}'] if j % 4 == 0 else []),
        lambda st, j, b: mf(AQ+16*(j&3), b, HB+4*(j>>2), '0' if st == 0 and j < 4 else None),
        [32, 36, 40, 44, 128, 132], 4, pre_q, ex)
    assert not pend
    a('s_barrier')
    for t in loads(11): a(*t)
    O, S0, S1, NM, P, KF = 48, 112, 128, 144, 160, 168
    VF = [32, 36, 40, 44, 200, 204, 208, 212]
    kread = lambda base: [(f'ds_read_b128 {vr(KF+4*s,4)}, v{24+s} offset:{base}', ('k', s)) for s in range(8)]
    a.stamp()
    for t in kread(0): a(*t)
    a('s_mov_b32 s38, 0x3e0293ee')
    for i in range(0, 64, 2):
        a(f'v_mul_f32 v{AQ+i}, s38, v{AQ+i}\n v_mul_f32 v{AQ+i+1}, s38, v{AQ+i+1}\n v_cvt_pk_bf16_f32 v{QP+i//2}, v{AQ+i}, v{AQ+i+1}')
    def qk(Sn, c0):
        def f(s):
            def g(): a.wlg(('k', s | 3)); a(mf(Sn, KF+4*s, QP+4*s, c0 if s == 0 else None))
            return g
        return [f(s) for s in range(8)]
    weave(a, qk(S0, '0'), [(f'v_mov_b32 v{O+i}, 0', None) for i in range(64)])
    for t in kread(8192): a(*t)
    def vmax(Sn):
        L = [(f'v_max3_f32 v8, v{Sn}, v{Sn+1}, v{Sn+2}', None), (f'v_max3_f32 v9, v{Sn+3}, v{Sn+4}, v{Sn+5}', None)]
        for i in range(6, 14, 4): L += [(f'v_max3_f32 v8, v8, v{Sn+i}, v{Sn+i+1}', None), (f'v_max3_f32 v9, v9, v{Sn+i+2}, v{Sn+i+3}', None)]
        return L + [(f'v_max3_f32 v8, v8, v{Sn+14}, v{Sn+15}', None), ('v_max_f32 v8, v8, v9', None)]
    a('v_mov_b32 v7, 0\n s_mov_b32 s27, 0\n s_mov_b32 s39, 0x41f00000')
    for r in range(24, 32): a(f'v_add_u32 v{r}, {SL(8)+16384}, v{r}')
    for t in vmax(S0): a(*t)
    a('v_mov_b32 v9, v8\n v_permlane32_swap_b32 v8, v9\n v_max_f32 v8, v8, v9')
    for i in range(16): a(f'v_sub_f32 v{S0+i}, v{S0+i}, v8\n v_sub_f32 v{NM+i}, 0, v8')
    a(f"""s_mov_b32 s40, {SL(8)}
    s_add_u32 s42, s35, {3*16384}
    s_add_u32 s43, s35, {4*16384}
    s_movk_i32 s46, 8192
    s_movk_i32 s47, 16384
    s_lshl_b32 s37, s2, 3
    s_add_u32 s37, s37, s24
    s_movk_i32 s38, 48
    s_cmp_ge_u32 s37, 683
    s_cselect_b32 s38, 56, s38
    s_cselect_b32 s44, 683, 0
    s_cmp_ge_u32 s37, 1366
    s_cselect_b32 s38, 64, s38
    s_cselect_b32 s44, 1366, s44
    s_sub_u32 s37, s37, s44
    s_mul_i32 s37, s37, {61*128}
    s_load_dwordx2 s[4:5], s[0:1], s38
    s_mov_b32 s6, {576*9216}
    v_lshlrev_b32 v216, 7, v1
    s_mul_i32 s38, s26, {16*1152}
    s_add_u32 s38, s38, s36
    s_mul_i32 s44, s24, {18*128}
    s_add_u32 s38, s38, s44
    s_mov_b64 exec, 0x3ffff
    buffer_load_dword v217, v216, s[16:19], s38 offen
    s_mov_b64 exec, -1
    v_add_u32 v216, s37, v216""")
    rare = []
    COST = lambda t: 8 if t.startswith('v_exp') else (4 if t.startswith('v_') else (24 if 'buffer' in t else 0))
    def block(Sc, Sn, kb, last, nok, early, top=None):
        N = lambda x: (x, None)
        E = [N(f'v_exp_f32 v{Sc+i}, v{Sc+i}') for i in range(16)]
        C = [N(f'v_cvt_pk_bf16_f32 v{P+i}, v{Sc+2*i}, v{Sc+2*i+1}') for i in range(8)]
        A = [N(f'v_add_f32 v10, v{Sc}, v{Sc+1}')] + [N(f'v_add_f32 v{10 if i&1 else 7}, v{10 if i&1 else 7}, v{Sc+i}') for i in range(2, 16)] + [N('v_add_f32 v7, v7, v10')]
        seq = E[0:3]
        for i in range(8):
            seq += [C[i]] + E[2*i+3:2*i+5]
            if i >= 2: seq += A[i-2:i-1]
        seq = seq[:7] + merge(seq[7:], early)
        tail = A[6:] + ([] if last else vmax(Sn))
        gaps = [[] for _ in range(16)]
        tot = sum(COST(t[0]) for t in seq); c = 0
        for t in seq:
            gaps[min(10, int(c * 11 / tot))].append(t); c += COST(t[0])
        for k, t in enumerate(tail): gaps[11 + k * 5 // len(tail)].append(t)
        vrd = [(f'ds_read_b64_tr_b16 {vr(VF[4*ks+db]+2*t,2)}, v{20+db} offset:{kb*8192+(16*ks+8*t)*256}', ('v', ks, db)) for ks in range(2) for db in range(4) for t in range(2)]
        for k, t in enumerate(vrd): gaps[(2 + k * 8 // 16) if top else k * 10 // 16].insert(1, t)
        if not nok:
            for k, t in enumerate(kread(kb * 8192)): gaps[8 + k].insert(1, t)
        q = qk(Sn, vr(NM, 16))
        for g in range(16):
            if g < 8:
                if not last: q[g]()
            else:
                ks, db = divmod(g - 8, 4)
                a.wlg(('v', ks, db | 1)); a(mf(O+16*db, VF[4*ks+db], P+4*ks))
            for t in gaps[g]: a(*t)
            if top and g == 1: top()
            if last and g == 10: a('s_waitcnt lgkmcnt(0)\n s_barrier')
        if not last:
            l1, l2 = a.label('rare'), a.label('back')
            a(f'v_cmp_lt_f32 vcc, s39, v8\n s_cbranch_vccnz {l1}\n {l2}:')
            rare.append((l1, l2, Sn))
    def dmas(h, tag):
        so = f's{42+h}'
        return [(f's_add_u32 m0, s41, {h*16384}\n ' + dma(5-h, 12-4*h, so), tag),
                (f's_add_u32 m0, s41, {h*16384+8192}\n s_add_u32 s38, {so}, s46\n s_add_u32 {so}, {so}, s47\n ' + dma(5-h, 12-4*h, 's38'), tag)]
    def iteration(last):
      def top():
        a("""s_add_u32 s44, s40, 32768
        s_cmp_eq_u32 s44, 163840
        s_cselect_b32 s44, 32768, s44
        s_sub_u32 s45, s44, s40
        s_add_u32 s41, s40, s30
        s_mov_b32 s40, s44""")
        for r in range(20, 24): a(f'v_add_u32 v{r}, s45, v{r}')
        if not last: a('s_cmp_ge_u32 s27, 4\n s_cbranch_scc1 att_sw\n att_swb:')
        a('s_waitcnt vmcnt(9) lgkmcnt(0)\n s_barrier')
      tag = ('d', 19) if last else None
      pf = [] if last else [('s_mov_b64 exec, 0x1ff\n buffer_load_dword v217, v216, s[4:7], 0 offen\n s_mov_b64 exec, -1\n v_add_u32 v216, 0x480, v216', None)]
      block(S0, S1, 0, False, last, merge([(f'v_add_u32 v{r}, s45, v{r}', None) for r in range(24, 32)], dmas(0, tag)), top)
      block(S1, S0, 1, last, last, dmas(1, tag) + pf)
    a.stamp()
    a('att_loop:')
    iteration(False)
    a('s_add_u32 s27, s27, 1\n s_cmp_lt_u32 s27, 7\n s_cbranch_scc1 att_loop')
    a.vm += [('d', 17)] * 4 + [('d', 18)] * 4
    a.stamp()
    iteration(True)
    a.stamp()
    OW, OP, C0, PK = 112, 144, 176, 208
    a('v_mov_b32 v9, v7\n v_permlane32_swap_b32 v7, v9\n v_add_f32 v7, v7, v9\n v_rcp_f32 v7, v7')
    a(f'''s_lshl_b32 s38, s28, 13
    s_lshl_b32 s37, s29, 17
    s_add_u32 s38, s38, s37
    v_add_u32 v13, s38, v14
    s_xor_b32 s38, s38, 131072
    v_add_u32 v14, s38, v14
    s_lshl_b32 s38, s29, 14
    s_add_u32 s38, s38, {SL(17)}
    v_add_u32 v16, s38, v15
    v_xor_b32 v17, 0x4000, v16''')
    for i in range(0, 64, 2):
        a(f'v_mul_f32 v{O+i}, v7, v{O+i}\n v_mul_f32 v{O+i+1}, v7, v{O+i+1}\n v_cvt_pk_bf16_f32 v{OW+i//2}, v{O+i}, v{O+i+1}')
        if i % 8 == 6: a(f'ds_write_b128 v13, {vr(OW+i//2-3,4)} offset:{(i//8)*1024}')
    def pre_o(st):
        a.wvm(('d', 17+st)); a('s_waitcnt lgkmcnt(0)\n s_barrier')
        if st in (0, 8): a.stamp()
        if st > 0:
            for r in (16, 17): a(f'v_add_u32 v{r}, {(SL(17+st)-SL(16+st)) & 0xffffffff}, v{r}')
        if st == 1: pend.extend(loads(20))
        if 1 <= st <= 5: pend.extend(loads(20 + st))
    def outp(st):
        C = C0 + 16*(st & 1); K = PK + 8*(st & 1)
        L = [(f'v_cvt_pk_bf16_f32 v{K+i}, v{C+2*i}, v{C+2*i+1}', None) for i in range(8)]
        L.insert(4, (f's_add_u32 s46, s33, {st*1024}\n buffer_store_dwordx4 {vr(K,4)}, v2, s[20:23], s46 offen ' + STA, 'st'))
        return L + [(f'buffer_store_dwordx4 {vr(K+4,4)}, v2, s[20:23], s46 offen offset:256 ' + STA, 'st')]
    def ex_o(st, j):
        L = []
        if st == 0 and j == 0: L += [(f'ds_read_b128 {vr(OP+4*i,4)}, v14 offset:{1024*i}', 'op') for i in range(8)]
        if st > 0 and 3 <= j < 8: L += outp(st-1)[2*(j-3):2*(j-3)+2]
        if pend and j % 2 == 0 and (j >= 8 or j < 3 or st < 3): L.append(pend.pop(0))
        return L
    gemm_phase(a, 9, 16,
        lambda st, j, b: [f'ds_read_b64_tr_b16 {vr(b+2*t,2)}, v{16+(j>>3)} offset:{(16*(j&7)+8*t)*128}' for t in range(2)],
        lambda st, j, b: mf(C0+16*(st&1), b, (OW if j < 8 else OP)+4*(j&7), '0' if j == 0 else None),
        [32, 36, 40, 44, 48, 52], 4, pre_o, ex_o)
    assert not pend
    for t in outp(8): a(*t)
    if FUSE & 1: a.stamp(); tail(a, 3, 'sc1' if FUSE & 4 else '')
    if FUSE & 4: gsig(a); k_ffn(a)
    else:
        a.dump(0x7000000, 20)
        a('s_endpgm')
    a(f'''att_sw:
    s_cmp_eq_u32 s27, 4
    s_cselect_b32 s38, {8*16384}, 0
    s_sub_u32 s43, s43, s38
    s_cmp_eq_u32 s27, 5
    s_cbranch_scc0 att_swb
    v_mov_b32 v4, v6
    v_mov_b32 v5, v6
    s_mov_b64 s[8:9], s[16:17]
    s_mov_b64 s[10:11], s[18:19]
    s_mov_b64 s[12:13], s[16:17]
    s_mov_b64 s[14:15], s[18:19]
    s_mov_b32 s42, s36
    s_add_u32 s43, s36, {128*1152}
    s_mov_b32 s46, {64*1152}
    s_movk_i32 s47, 128
    s_branch att_swb''')
    for l1, l2, Sn in rare:
        a(f'''{l1}:
        s_nop 11
        v_mov_b32 v9, v8
        v_permlane32_swap_b32 v8, v9
        v_max3_f32 v8, v8, v9, 0
        v_sub_f32 v9, 0, v8
        v_exp_f32 v9, v9''')
        for i in range(16): a(f'v_sub_f32 v{Sn+i}, v{Sn+i}, v8\n v_sub_f32 v{NM+i}, v{NM+i}, v8')
        for i in range(64): a(f'v_mul_f32 v{O+i}, v9, v{O+i}')
        a(f'v_mul_f32 v7, v9, v7\n s_nop 1\n s_branch {l2}')
    return a, 256, 256, 512, 163840
SF = lambda i: 36864 * (i % 4)
def k_ffn(a=None):
    global mf
    if os.environ.get('FAKE16'): mf = mf16
    if a is None: a = Asm(); a.stamp(); guard(a, 256)
    HF = ' sc1' if FUSE & 4 else ''
    if os.environ.get('NOLOC'): a('s_lshr_b32 s25, s2, 4\n s_and_b32 s26, s2, 15\n s_lshl_b32 s26, s26, 4\n s_or_b32 s2, s25, s26')
    srd(a, 4, 48, 576*9216); srd(a, 12, 48, 576*9216); srd(a, 8, 56, 576*9216); srd(a, 16, 64, 4608*1152)
    if not FUSE & 4: srd(a, 20, 104, WS_SZ)
    lanebits(a)
    a(f'''s_and_b32 s25, s2, 7
    s_bfe_u32 s26, s2, 0x10003
    s_lshl_b32 s26, s26, 3
    s_add_u32 s25, s25, s26
    s_lshr_b32 s26, s2, 4
    s_and_b32 s28, s24, 3
    s_lshr_b32 s29, s24, 2
    s_mul_i32 s30, s24, 4608
    s_lshl_b32 s31, s26, 2
    s_add_u32 s31, s31, s28
    s_mul_i32 s31, s31, 36864
    s_add_u32 s32, s31, {WS_H2}
    s_mul_i32 s33, s25, {PSZ}
    s_add_u32 s33, s33, s31
    s_lshl_b32 s34, s29, 9
    s_add_u32 s33, s33, s34
    s_add_u32 s33, s33, {WS_PB}
    s_mul_i32 s34, s25, 576
    s_mul_i32 s35, s28, {8*9216}
    s_add_u32 s34, s34, s35
    s_mul_i32 s36, s25, {288*1152}
    s_mul_i32 s35, s24, {36*1152}
    s_add_u32 s36, s36, s35
    s_lshl_b32 s37, s29, 1''')
    for q in range(5):
        a(f'''v_add_u32 v13, {64*q}, v1
        v_mul_u32_u24 v14, 1821, v13
        v_lshrrev_b32 v14, 16, v14
        v_mul_u32_u24 v15, 36, v14
        v_sub_u32 v13, v13, v15
        v_xor_b32 v13, s37, v13
        v_mul_u32_u24 v{3+q}, 9216, v14
        v_lshl_add_u32 v{3+q}, v13, 4, v{3+q}''')
        if 0 < q < 4: a(f'v_subrev_u32 v{3+q}, {1024*q}, v{3+q}')
    a(f'''; vDd -> v19
    v_lshrrev_b32 v13, 3, v1
    v_mul_u32_u24 v19, 1152, v13
    v_bfe_u32 v13, v1, 2, 1
    v_xor_b32 v13, v13, v10
    v_lshl_add_u32 v19, v13, 6, v19
    v_lshl_add_u32 v19, v11, 4, v19
    ; aG -> v16
    v_lshl_add_u32 v13, v8, 3, v9
    v_mul_u32_u24 v16, 576, v13
    v_lshl_add_u32 v16, v11, 3, v16
    v_mul_u32_u24 v13, 18432, v10
    v_add_u32 v16, v16, v13
    v_xor_b32 v13, s29, v10
    v_lshl_add_u32 v16, v13, 5, v16
    v_lshl_add_u32 v13, v8, 2, v9
    v_lshlrev_b32 v17, 7, v13
    v_lshrrev_b32 v13, 1, v9
    v_xor_b32 v13, s29, v13
    v_lshl_add_u32 v17, v13, 6, v17
    v_lshl_add_u32 v17, v10, 5, v17
    v_lshl_add_u32 v17, v12, 3, v17
    s_lshl_b32 s38, s29, 11
    v_add_u32 v17, s38, v17
    v_xor_b32 v18, 0x800, v17
    v_add_u32 v17, {SF(18)}, v17
    v_add_u32 v18, {SF(18)}, v18
    v_lshlrev_b32 v13, 4, v1
    s_mul_i32 s38, s24, 9216
    v_add_u32 v20, s38, v13
    s_xor_b32 s38, s24, 4
    s_mul_i32 s38, s38, 9216
    v_add_u32 v21, s38, v13
    v_mov_b32 v22, 0xc0135761
    s_mov_b32 s42, 0xbdd2d3e8
    s_mov_b32 s43, s42
    v_mov_b32 v23, v22
    s_waitcnt lgkmcnt(0)
    s_cmp_eq_u32 s29, 0
    s_cselect_b32 s4, s4, s8
    s_cselect_b32 s5, s5, s9''')
    ACC, HR = 112, 64
    half = lambda t: f's_mov_b32 exec_hi, 0\n {t}\n s_mov_b32 exec_hi, -1'
    def loads(idx):
        tg = ('d', idx)
        if idx < 18:
            L = [(f's_add_u32 m0, s30, {SF(idx)}\n s_add_u32 s38, s34, {idx*32*9216}\n ' + dma(3, 4, 's38'), tg)]
            L += [(dma(3+q, 4, 's38').replace(' lds', f' offset:{1024*q} lds'), tg) for q in range(1, 4)]
            L += [(f's_add_u32 m0, m0, 4096\n ' + half(dma(7, 4, 's38')), tg)]
            L += [(f's_add_u32 s40, s32, {idx*512}\n buffer_load_dwordx4 {vr(HR+8*(idx%4),4)}, v2, s[20:23], s40 offen{HF}', tg)]
            L += [(f'buffer_load_dwordx4 {vr(HR+8*(idx%4)+4,4)}, v2, s[20:23], s40 offen offset:256{HF}', tg)]
            return L
        L = []
        for q in range(5):
            d = dma(19, 16, 's38')
            L += [(f's_add_u32 m0, s30, {SF(idx)+1024*q}\n s_add_u32 s38, s36, {q*8*1152+(idx-18)*128}\n ' + (half(d) if q == 4 else d), tg)]
        return L
    if FUSE & 4:
        for idx in range(3):
            for t in loads(idx)[:5]: a(*t)
        gwait(a)
        for idx in range(3):
            for t in loads(idx)[5:]: a(*t)
    else:
      for idx in range(3):
        for t in loads(idx): a(*t)
    def prefetch():
        a(f'''v_mul_u32_u24 v28, 13108, v0
        v_lshrrev_b32 v28, 16, v28
        v_mul_u32_u24 v29, 5, v28
        v_sub_u32 v29, v0, v29
        v_mul_u32_u24 v28, 9216, v28
        v_lshl_add_u32 v28, v29, 7, v28
        s_mul_i32 s37, s26, {36*9216}
        s_mul_i32 s38, s25, 576
        s_add_u32 s37, s37, s38
        s_and_b32 s37, s37, 0xffffff80
        v_cmp_gt_u32 vcc, 0xb4, v0
        s_and_saveexec_b64 s[40:41], vcc
        s_cbranch_execz pf_d
        buffer_load_dword v31, v28, s[12:15], s37 offen
        buffer_load_dword v31, v28, s[8:11], s37 offen
        s_branch pf_done
        pf_d:
        s_mov_b64 exec, s[40:41]
        v_subrev_u32 v29, 192, v0
        v_min_u32 v29, 161, v29
        v_lshlrev_b32 v29, 7, v29
        s_mul_i32 s37, s25, {288*1152}
        s_mul_i32 s38, s26, {18*1152}
        s_add_u32 s37, s37, s38
        s_cmp_lt_u32 s24, 6
        s_cbranch_scc0 pf_done
        buffer_load_dword v31, v29, s[16:19], s37 offen
        pf_done:
        s_mov_b64 exec, s[40:41]''')
        del a.vm[-3:]
    pend = []
    def pre_g(st):
        a.wvm(('d', st)); a('s_waitcnt lgkmcnt(0)\n s_barrier')
        if st in (0, 1, 4, 10, 17): a.stamp()
        if st == 0 and os.environ.get('L2PF'): prefetch()
        if st > 0: a(f'v_add_u32 v16, {(SF(st)-SF(st-1)) & 0xffffffff}, v16')
        if st + 3 < 20: pend.extend(loads(st + 3))
    HW, HP, C0, PK = 64, 112, 160, 192
    def geglu(i):
        A = ACC + 16*i
        for r in range(0, 8, 4):
            Q = [(vr(24+2*k, 2), vr(A+r+2*k, 2), vr(A+r+2*k+8, 2)) for k in range(2)]
            for T, G, U in Q: a(f'v_pk_mul_f32 {T}, {G}, {G}')
            for T, G, U in Q: a(f'v_pk_fma_f32 {T}, {T}, s[42:43], v[22:23] op_sel_hi:[1,0,0]')
            for T, G, U in Q: a(f'v_pk_mul_f32 {T}, {T}, {G}')
            for k in range(4): a(f'v_exp_f32 v{24+k}, v{24+k}')
            for T, G, U in Q: a(f'v_pk_mul_f32 {G}, {G}, {U}')
            for T, G, U in Q: a(f'v_pk_add_f32 {T}, {T}, 1.0 op_sel_hi:[1,0]')
            for k in range(4): a(f'v_rcp_f32 v{24+k}, v{24+k}')
            for T, G, U in Q: a(f'v_pk_mul_f32 {G}, {G}, {T}')
            for k in range(2): a(f'v_cvt_pk_bf16_f32 v{HX[i]+r//2+k}, v{A+r+2*k}, v{A+r+2*k+1}')
    HX = [80, 84, 88, 92, 96, 100, 104, 64, 68]
    wr = lambda i: a(f'ds_write_b128 v20, {vr(HX[i],4)} offset:{1024*i}')
    def ex(st, j):
        if st == 17 and j >= 11:
            geglu(j - 11)
            if j == 14:
                a('s_waitcnt lgkmcnt(0)\n s_barrier')
                for i in range(4): wr(i)
            if j > 14: wr(j - 11)
        return [pend.pop(0)] if pend and (j in (15, 17, 2, 5, 7, 10, 12) if GF else j % 2) else []
    gemm_phase(a, 18, 18,
        lambda st, j, b: [f'ds_read_b64_tr_b16 {vr(b+2*t,2)}, v16 offset:{64*(j%9)+(16*(j//9)+4*t)*576}' for t in range(2)],
        lambda st, j, b: mf(ACC+16*(j%9), b, HR+8*(st%4)+4*(j//9), '0' if st == 0 and j < 9 else None),
        [32, 36, 40, 44, 48, 52], 4, pre_g, ex)
    assert not pend
    for i in (7, 8): geglu(i); wr(i)
    def pre_d(st):
        a.wvm(('d', 18+st)); a('s_waitcnt lgkmcnt(0)\n s_barrier')
        if st in (0, 1, 2, 4, 8): a.stamp()
        if st > 0:
            for r in (17, 18): a(f'v_add_u32 v{r}, {(SF(18+st)-SF(17+st)) & 0xffffffff}, v{r}')
        if 1 <= st <= 5: pend.extend(loads(21 + st))
    def outp(st):
        C = C0 + 16*(st & 1); K = PK + 8*(st & 1)
        L = [(f'v_cvt_pk_bf16_f32 v{K+i}, v{C+2*i}, v{C+2*i+1}', None) for i in range(8)]
        L.insert(4, (f's_add_u32 s46, s33, {st*1024}\n buffer_store_dwordx4 {vr(K,4)}, v2, s[20:23], s46 offen ' + STB, 'st'))
        return L + [(f'buffer_store_dwordx4 {vr(K+4,4)}, v2, s[20:23], s46 offen offset:256 ' + STB, 'st')]
    def ex_d(st, j):
        L = []
        if st == 0 and j == 0: L += [(f'ds_read_b128 {vr(HP+4*i,4)}, v21 offset:{1024*i}', 'op') for i in range(9)]
        if st == 0 and j == 5: a('s_barrier'); pend.extend(loads(20) + loads(21))
        if st > 0 and 3 <= j < 8: L += outp(st-1)[2*(j-3):2*(j-3)+2]
        if pend and (st == 0 or (j % 2 == 0 and (j >= 8 or j < 3))): L.append(pend.pop(0))
        return L
    gemm_phase(a, 9, 18,
        lambda st, j, b: [f'ds_read_b64_tr_b16 {vr(b+2*t,2)}, v{17+j//9} offset:{4096*(j%9)+1024*t}' for t in range(2)],
        lambda st, j, b: mf(C0+16*(st&1), b, HX[j] if j < 9 else HP+4*(j-9), '0' if j == 0 else None),
        [32, 36, 40, 44, 48, 52], 4, pre_d, ex_d)
    assert not pend
    for t in outp(8): a(*t)
    if FUSE & 2: a.stamp(); tail(a, 5, HF)
    a.dump(0x7100000, 20)
    a('s_endpgm')
    return a, 256, 256, 512, 147456
```

```python
from asm import *
import os
WS_MOD, WS_H, WS_X1, WS_H2, WS_PA, WS_PB, PSZ = 0, 0x10000, 0x300000, 0x600000, 0x1000000, 0x4000000, 2359296
WS_SZ = 0x8000000
def srd(a, d, koff, nbytes):
    a(f's_load_dwordx2 s[{d}:{d+1}], s[0:1], {koff}\n s_mov_b32 s{d+2}, {nbytes}\n s_mov_b32 s{d+3}, 0x00020000')
def guard(a, n):
    l = a.label('go')
    a(f's_cmp_lt_u32 s2, {n}\n s_cbranch_scc1 {l}\n s_endpgm\n {l}:')
def unpack(a, d, s, n):
    for i in range(n):
        a(f'v_lshlrev_b32 v{d+2*i}, 16, v{s+i}\n v_and_b32 v{d+2*i+1}, 0xffff0000, v{s+i}')
def k_mod(a):
    srd(a, 4, 72, 1152); srd(a, 8, 80, 576*6912); srd(a, 12, 104, WS_SZ); srd(a, 20, 96, 256)
    a('''v_lshrrev_b32 v1, 3, v0
    v_and_b32 v2, 7, v0
    v_lshlrev_b32 v3, 4, v1
    s_mov_b32 s16, 55296
    v_mul_lo_u32 v4, v1, s16
    v_lshl_add_u32 v4, v2, 4, v4
    s_lshl_b32 s17, s2, 7
    s_waitcnt lgkmcnt(0)
    buffer_load_dwordx4 v[8:11], v3, s[4:7], 0 offen''')
    for j in range(8):
        a(f'buffer_load_dwordx4 v[{16+4*j}:{19+4*j}], v4, s[8:11], s17 offen\n s_add_u32 s17, s17, 6912')
    a('s_waitcnt vmcnt(8)')
    unpack(a, 48, 8, 4)
    for j in range(8):
        a(f'v_mul_f32 v{56+j}, 0xbfb8aa3b, v{48+j}\n v_exp_f32 v{56+j}, v{56+j}\n v_add_f32 v{56+j}, 1.0, v{56+j}\n v_rcp_f32 v{56+j}, v{56+j}\n v_mul_f32 v{48+j}, v{48+j}, v{56+j}')
    for j in range(4): a(f'v_cvt_pk_bf16_f32 v{8+j}, v{48+2*j}, v{49+2*j}')
    unpack(a, 48, 8, 4)
    for j in range(8):
        a(f's_waitcnt vmcnt({7-j})')
        unpack(a, 56, 16+4*j, 4)
        for c in range(8):
            a(f'v_mul_f32 v{64+c}, v{48+j}, v{56+c}' if j == 0 else f'v_fmac_f32 v{64+c}, v{48+j}, v{56+c}')
    a('''v_lshlrev_b32 v5, 5, v0
    ds_write_b128 v5, v[64:67]
    ds_write_b128 v5, v[68:71] offset:16
    v_and_b32 v6, 63, v0
    v_lshrrev_b32 v7, 6, v0
    v_lshlrev_b32 v6, 2, v6
    v_lshl_add_u32 v7, v7, 11, v6
    s_waitcnt lgkmcnt(0)
    s_barrier''')
    for i in range(8): a(f'ds_read_b32 v{16+i}, v7 offset:{256*i}')
    a('s_waitcnt lgkmcnt(0)')
    for i in range(1, 8): a(f'v_add_f32 v16, v16, v{16+i}')
    a('''v_lshlrev_b32 v5, 2, v0
    ds_write_b32 v5, v16 offset:18432
    s_waitcnt lgkmcnt(0)
    s_barrier
    v_readfirstlane_b32 s18, v0
    s_cmp_lt_u32 s18, 64
    s_cbranch_scc1 kmod_fin
    s_endpgm
    kmod_fin:''')
    for i in range(9): a(f'ds_read_b32 v{16+i}, v6 offset:{18432+256*i}')
    a('s_waitcnt lgkmcnt(0)')
    for i in range(1, 9): a(f'v_add_f32 v16, v16, v{16+i}')
    a('''v_cvt_pk_bf16_f32 v16, v16, v16
    v_lshlrev_b32 v16, 16, v16
    s_sub_u32 s19, s2, 9
    s_cmp_lt_u32 s19, 9
    s_cselect_b32 s24, 1.0, 0
    s_sub_u32 s19, s2, 36
    s_cmp_lt_u32 s19, 9
    s_cselect_b32 s24, 1.0, s24
    v_add_f32 v16, s24, v16
    v_cvt_pk_bf16_f32 v16, v16, v16
    v_lshlrev_b32 v16, 16, v16
    s_lshl_b32 s17, s2, 8
    buffer_store_dword v16, v6, s[12:15], s17 offen
    s_cmp_lt_u32 s2, 18
    s_cbranch_scc0 kmod_end
    s_cmp_lt_u32 s2, 9
    s_cselect_b32 s17, 32, 0
    s_cselect_b32 s18, 0, 9
    s_sub_u32 s18, s2, s18
    s_lshl_b32 s18, s18, 9
    s_add_u32 s17, s17, s18
    s_add_u32 s17, s17, 0x4000
    v_lshrrev_b32 v1, 3, v0
    v_and_b32 v2, 7, v0
    v_lshlrev_b32 v2, 2, v2
    ''' + ('''s_cmp_lt_u32 s2, 9
    s_cselect_b32 s18, 0, 16
    v_and_b32 v3, 1, v0
    v_cmp_eq_u32 vcc, 0, v3
    v_lshrrev_b32 v3, s18, v16
    v_cndmask_b32 v16, v16, v3, vcc''' if os.environ.get('DOT') else '') + '''
    v_lshl_add_u32 v1, v1, 6, v2
    buffer_store_dword v16, v1, s[12:15], s17 offen
    kmod_end:
    s_endpgm''')
def rowsum(a, v, t, ldsoff):
    a(f'''v_add_f32_dpp v{v}, v{v}, v{v} row_ror:8 row_mask:0xf bank_mask:0xf
    ds_swizzle_b32 v{t}, v{v} offset:0x401F
    s_waitcnt lgkmcnt(0)
    v_add_f32 v{v}, v{v}, v{t}
    v_mov_b32 v{t}, v{v}
    v_permlane32_swap_b32 v{v}, v{t}
    v_add_f32 v{v}, v{v}, v{t}
    ds_write_b32 v3, v{v} offset:{ldsoff}
    s_waitcnt lgkmcnt(0)
    s_barrier
    ds_read_b128 v[{t}:{t+3}], v2 offset:{ldsoff}
    ds_read_b128 v[{t+4}:{t+7}], v2 offset:{ldsoff+16}
    ds_read_b32 v{v}, v2 offset:{ldsoff+32}
    s_waitcnt lgkmcnt(0)''')
    for i in range(0, 8, 2): a(f'v_add_f32 v{t+i}, v{t+i}, v{t+i+1}')
    a(f'v_add_f32 v{t}, v{t}, v{t+2}\n v_add_f32 v{t+4}, v{t+4}, v{t+6}\n v_add_f32 v{v}, v{v}, v{t}\n v_add_f32 v{v}, v{v}, v{t+4}')
PFM = os.environ.get('PFM', 'early')
def warm(a):
        a(f'''v_lshlrev_b32 v50, 7, v0
        v_cmp_gt_u32 vcc, 0x90, v0
        s_and_saveexec_b64 s[40:41], vcc
        s_cbranch_execz pf_kv
        s_mul_i32 s17, s2, {144*128}
        buffer_load_dword v51, v50, s[24:27], s17 offen
        s_mov_b64 exec, s[40:41]
        s_waitcnt vmcnt(1)
        s_branch pf_end
        pf_kv:
        s_mov_b64 exec, s[40:41]
        v_readfirstlane_b32 s18, v0
        s_branch pf_done
        v_and_b32 v50, 63, v0
        v_lshlrev_b32 v50, 7, v50
        s_lshr_b32 s17, s2, 4
        s_lshl_b32 s17, s17, 19
        s_and_b32 s18, s2, 15
        s_lshl_b32 s18, s18, 13
        s_add_u32 s17, s17, s18
        s_add_u32 s17, s17, {1536*256}
        buffer_load_dword v51, v50, s[28:31], s17 offen
        buffer_load_dword v51, v50, s[32:35], s17 offen
        s_waitcnt vmcnt(2)
        s_branch pf_end
        pf_done:
        s_waitcnt vmcnt(0)
        pf_end:''')
def k_ln(mode):
    a = Asm()
    if mode == 1:
        a('s_cmp_lt_u32 s2, 54\n s_cbranch_scc0 ln1')
        k_mod(a)
        a('ln1:\n s_cmp_eq_u32 s2, 54\n s_cbranch_scc0 ln1b')
        srd(a, 12, 104, WS_SZ)
        a('v_lshrrev_b32 v1, 4, v0\n v_lshlrev_b32 v1, 8, v1\n v_and_b32 v2, 15, v0\n v_lshl_add_u32 v1, v2, 3, v1\n v_mov_b32 v2, 0\n v_mov_b32 v3, 0\n v_cmp_gt_u32 vcc, 0x200, v0\n s_and_saveexec_b64 s[40:41], vcc\n s_mov_b32 s17, 0x8000\n s_waitcnt lgkmcnt(0)\n buffer_store_dwordx2 v[2:3], v1, s[12:15], s17 offen\n s_endpgm')
        a('ln1b:\n s_sub_u32 s2, s2, 56')
        srd(a, 20, 96, 256); srd(a, 24, 24, 576*8192); srd(a, 28, 8, 16*524288); srd(a, 32, 16, 16*524288); srd(a, 36, 32, 4096*1152)
    guard(a, 256)
    srd(a, 4, 0, PSZ); srd(a, 12, 104, WS_SZ); srd(a, 8, 88, PSZ)
    a('''v_lshlrev_b32 v1, 4, v0
    v_and_b32 v2, 7, v0
    v_lshrrev_b32 v5, 3, v0
    s_movk_i32 s16, 1152
    v_mul_lo_u32 v4, v2, s16
    v_lshl_add_u32 v4, v5, 4, v4
    v_lshlrev_b32 v5, 5, v5
    v_lshlrev_b32 v2, 6, v2
    v_lshrrev_b32 v3, 6, v0
    v_lshl_add_u32 v3, v3, 2, v2
    s_mul_i32 s16, s2, 9216
    s_waitcnt lgkmcnt(0)''')
    X, M, P, A, T = (8, 16, 48, 112, 120) if mode != 1 else (8, 16, 12, 32, 40)
    if mode == 5:
        a(f's_add_u32 s17, s16, {WS_X1}\n buffer_load_dwordx4 v[{X}:{X+3}], v1, s[12:15], s17 offen', 'x')
    else:
        a(f'buffer_load_dwordx4 v[{X}:{X+3}], v4, s[4:7], s16 offen', 'x')
    if mode != 1:
        a(f's_add_u32 s17, s16, {WS_PA if mode == 3 else WS_PB}')
        for p in range(16):
            a(f'buffer_load_dwordx4 v[{P+4*p}:{P+4*p+3}], v1, s[12:15], s17 offen', f'p{p}')
            if p < 15: a(f's_add_u32 s17, s17, {PSZ}')
    segs = {1: [0, 1], 3: [2, 3, 4], 5: [5]}[mode]
    def modloads(fl=''):
      for i, sg in enumerate(segs):
        a(f's_movk_i32 s18, {sg*2304}\n buffer_load_dwordx4 v[{M+8*i}:{M+8*i+3}], v5, s[12:15], s18 offen {fl}\n buffer_load_dwordx4 v[{M+8*i+4}:{M+8*i+7}], v5, s[12:15], s18 offen offset:16 {fl}', 'm')
    if mode != 1: modloads()
    if mode != 1:
        for p in range(16):
            a.wvm(f'p{p}')
            if p == 0: unpack(a, A, P, 4)
            else:
                unpack(a, T, P+4*p, 4)
                for c in range(8): a(f'v_add_f32 v{A+c}, v{A+c}, v{T+c}')
        a.wvm('m')
        unpack(a, T, X, 4)
        for c in range(8): a(f'v_fma_f32 v{A+c}, v{A+c}, v{M+c}, v{T+c}')
        for c in range(4): a(f'v_cvt_pk_bf16_f32 v{X+c}, v{A+2*c}, v{A+2*c+1}')
        if mode == 5:
            a(f'buffer_store_dwordx4 v[{X}:{X+3}], v4, s[8:11], s16 offen\n s_endpgm')
            return a, 136, 256, 576, 0
        a(f's_add_u32 s17, s16, {WS_X1}\n buffer_store_dwordx4 v[{X}:{X+3}], v1, s[12:15], s17 offen')
        M += 8
    else:
        if PFM == 'early': warm(a)
        else: a.wvm('x')
    unpack(a, A, X, 4)
    S = 6
    a(f'v_add_f32 v{S}, v{A}, v{A+1}')
    for c in range(2, 8): a(f'v_add_f32 v{S}, v{S}, v{A+c}')
    rowsum(a, S, T, 0)
    a(f'v_mul_f32 v{S}, 0x3ae38e39, v{S}')
    for c in range(8): a(f'v_sub_f32 v{A+c}, v{A+c}, v{S}')
    a(f'v_mul_f32 v{S}, v{A}, v{A}')
    for c in range(1, 8): a(f'v_fmac_f32 v{S}, v{A+c}, v{A+c}')
    rowsum(a, S, T, 512)
    a(f'v_mov_b32 v7, 0x3727c5ac\n v_fmac_f32 v7, 0x3ae38e39, v{S}\n v_rsq_f32 v7, v7')
    if mode == 1:
        for c in range(8): a(f'v_mul_f32 v{A+c}, v{A+c}, v7')
    else:
        a.wvm('m')
        for c in range(8): a(f'v_mul_f32 v{A+c}, v{A+c}, v7\n v_fma_f32 v{A+c}, v{A+c}, v{M+8+c}, v{M+c}')
    for c in range(4): a(f'v_cvt_pk_bf16_f32 v{P+c}, v{A+2*c}, v{A+2*c+1}')
    a(f's_add_u32 s17, s16, {WS_H if mode == 1 else WS_H2}\n buffer_store_dwordx4 v[{P}:{P+3}], v1, s[12:15], s17 offen\n s_endpgm')
    return (a, 136, 256, 576, 1024) if mode != 1 else (a, 72, 312, 576, 18432+2304)
def gsig(a):
    a('''s_waitcnt vmcnt(0) lgkmcnt(0)
    s_barrier
    s_lshl_b32 s45, s26, 8
    s_add_u32 s45, s45, 0x8040
    s_cmp_eq_u32 s24, 0
    s_cbranch_scc0 gs_d
    v_mov_b32 v250, 1
    v_mov_b32 v251, 0
    s_mov_b64 exec, 1
    buffer_atomic_add v250, v251, s[20:23], s45 offen sc1
    s_mov_b64 exec, -1
    gs_d:''')
    a.vm = []; a.lg = []; a.lgdone = 0
def gwait(a):
    n = len(a.vm)
    a('''s_cmp_eq_u32 s24, 0
    s_cbranch_scc0 gw_d
    s_mov_b32 s44, 0x40000
    s_mov_b64 exec, 1
    gw_p:
    buffer_load_dword v250, v251, s[20:23], s45 offen sc1
    s_waitcnt vmcnt(0)
    v_readfirstlane_b32 s47, v250
    s_sub_u32 s44, s44, 1
    s_cbranch_scc1 gw_x
    s_cmp_ge_u32 s47, 16
    s_cbranch_scc1 gw_x
    s_sleep 2
    s_branch gw_p
    gw_x:
    s_mov_b64 exec, -1
    gw_d:
    s_barrier''')
    del a.vm[n:]
def tail(a, mode, fl=''):
    srd(a, 4, 0, PSZ); srd(a, 8, 88, PSZ)
    X, M, P, A, T, XE, ME, PE = 8, 16, 48, 112, 124, 12, 40, 140
    a(f'''v_mbcnt_lo_u32_b32 v0, -1, 0
    v_mbcnt_hi_u32_b32 v0, -1, v0
    s_lshl_b32 s16, s24, 6
    v_add_u32 v0, s16, v0
    v_lshlrev_b32 v1, 4, v0
    v_and_b32 v2, 7, v0
    v_lshrrev_b32 v5, 3, v0
    v_mul_u32_u24 v4, 1152, v2
    v_lshl_add_u32 v158, v5, 2, v4
    v_add_u32 v158, 1024, v158
    v_lshl_add_u32 v4, v5, 4, v4
    v_lshlrev_b32 v159, 3, v5
    v_add_u32 v159, 2048, v159
    v_and_b32 v157, 3, v5
    v_lshlrev_b32 v157, 2, v157
    v_lshl_add_u32 v157, v2, 4, v157
    v_lshrrev_b32 v3, 5, v0
    v_lshl_add_u32 v157, v3, 7, v157
    v_add_u32 v157, 8192, v157
    v_lshlrev_b32 v5, 5, v5
    v_lshlrev_b32 v2, 6, v2
    s_lshl_b32 s17, s24, 2
    v_add_u32 v3, s17, v2
    s_lshl_b32 s16, s26, 4
    s_add_u32 s16, s16, s25
    s_mul_i32 s16, s16, 9216
    s_cmp_lt_u32 s24, 4
    s_cselect_b32 s44, 1.0, 0
    s_cselect_b64 s[40:41], -1, 0
    v_mov_b32 v{XE}, 0''')
    for i in range(16): a(f'v_mov_b32 v{PE+i}, 0')
    segs = {3: [2, 3, 4], 5: [5]}[mode]
    for i in range(2*len(segs)): a(f'v_mov_b32 v{ME+i}, 0')
    a(f's_waitcnt lgkmcnt(0)\n s_add_u32 s17, s16, {WS_X1}\n s_mov_b64 exec, s[40:41]')
    xs = 'v157, s[20:23], s17' if mode == 5 else 'v158, s[4:7], s16'
    a(f'buffer_load_dword v{XE}, {xs} offen {fl if mode == 5 else ""}')
    for i, sg in enumerate(segs): a(f's_movk_i32 s18, {sg*2304}\n buffer_load_dwordx2 v[{ME+2*i}:{ME+2*i+1}], v159, s[20:23], s18 offen')
    a('s_mov_b64 exec, -1')
    xs = 'v1, s[20:23], s17' if mode == 5 else 'v4, s[4:7], s16'
    a(f'buffer_load_dwordx4 v[{X}:{X+3}], {xs} offen {fl if mode == 5 else ""}')
    for i, sg in enumerate(segs):
        a(f's_movk_i32 s18, {sg*2304}\n buffer_load_dwordx4 v[{M+8*i}:{M+8*i+3}], v5, s[20:23], s18 offen\n buffer_load_dwordx4 v[{M+8*i+4}:{M+8*i+7}], v5, s[20:23], s18 offen offset:16')
    base = WS_PA if mode == 3 else WS_PB
    nm = f'pg{mode}'
    a(f'''v_mov_b32 v7, 1024
    v_mov_b32 v6, 0
    ds_write_b32 v7, v6
    s_mov_b32 s45, 0
    s_mov_b32 s46, 0
    s_add_u32 s47, s16, {base}
    s_waitcnt vmcnt(0) lgkmcnt(0)
    s_barrier''')
    a.stamp()
    a(f'''s_cmp_eq_u32 s24, 0
    s_cbranch_scc0 {nm}_d
    s_lshl_b32 s17, s26, 8
    s_add_u32 s17, s17, {0x8000 + (0 if mode == 3 else 4096)}
    s_lshl_b32 s19, s25, 2
    s_add_u32 s19, s19, s17
    s_mov_b32 s18, 0x40000
    v_mov_b32 v6, 1
    v_lshlrev_b32 v156, 2, v0
    s_mov_b64 exec, 1
    buffer_store_dword v6, v156, s[20:23], s19 offen sc1
    s_mov_b64 exec, 0xffff
    {nm}_p:
    buffer_load_dword v6, v156, s[20:23], s17 offen sc1
    s_waitcnt vmcnt(0)
    v_cmp_eq_u32 vcc, 1, v6
    s_sub_u32 s18, s18, 1
    s_cselect_b32 s45, 0xffff, vcc_lo
    v_mov_b32 v6, s45
    ds_write_b32 v7, v6
    s_cmp_eq_u32 s45, 0xffff
    s_cbranch_scc1 {nm}_x
    s_sleep 2
    s_branch {nm}_p
    {nm}_x:
    s_mov_b64 exec, -1
    {nm}_d:''')
    for k in range(16):
        a(f'''{nm}_l{k}:
        s_andn2_b32 s18, s45, s46
        s_cbranch_scc1 {nm}_g{k}
        s_sleep 1
        ds_read_b32 v6, v7
        s_waitcnt lgkmcnt(0)
        v_readfirstlane_b32 s45, v6
        s_branch {nm}_l{k}
        {nm}_g{k}:
        s_ff1_i32_b32 s18, s18
        s_bitset1_b32 s46, s18
        s_mul_i32 s17, s18, {PSZ}
        s_add_u32 s17, s17, s47
        s_mov_b64 exec, s[40:41]
        buffer_load_dword v{PE+k}, v157, s[20:23], s17 offen sc1
        s_mov_b64 exec, -1
        buffer_load_dwordx4 v[{P+4*k}:{P+4*k+3}], v1, s[20:23], s17 offen sc1''')
    a.stamp()
    for p in range(16):
        a(f's_waitcnt vmcnt({15-p})')
        if p == 0: unpack(a, A, P, 4); unpack(a, A+8, PE, 1)
        else:
            unpack(a, T, P+4*p, 4); unpack(a, T+8, PE+p, 1)
            for c in range(10): a(f'v_add_f32 v{A+c}, v{A+c}, v{T+c}')
    unpack(a, T, X, 4); unpack(a, T+8, XE, 1)
    mr = lambda i, c: M+8*i+c if c < 8 else ME+2*i+c-8
    for c in range(10): a(f'v_fma_f32 v{A+c}, v{A+c}, v{mr(0,c)}, v{T+c}')
    for c in range(5): a(f'v_cvt_pk_bf16_f32 v{X+c}, v{A+2*c}, v{A+2*c+1}')
    def st(R, om, oe, sd, so, f):
        a(f'buffer_store_dwordx4 v[{R}:{R+3}], v{om}, {sd}, {so} offen {f}\n s_mov_b64 exec, s[40:41]\n buffer_store_dword v{R+4}, v{oe}, {sd}, {so} offen {f}\n s_mov_b64 exec, -1')
    if mode == 5: return st(X, 4, 158, 's[8:11]', 's16', '')
    a(f's_add_u32 s17, s16, {WS_X1}'); st(X, 1, 157, 's[20:23]', 's17', fl)
    unpack(a, A, X, 5)
    S = 6
    def rs(off):
        a(f'''v_add_f32_dpp v{S}, v{S}, v{S} row_ror:8 row_mask:0xf bank_mask:0xf
        ds_swizzle_b32 v{T}, v{S} offset:0x401F
        s_waitcnt lgkmcnt(0)
        v_add_f32 v{S}, v{S}, v{T}
        v_mov_b32 v{T}, v{S}
        v_permlane32_swap_b32 v{S}, v{T}
        v_add_f32 v{S}, v{S}, v{T}
        ds_write_b32 v3, v{S} offset:{off}
        s_waitcnt lgkmcnt(0)
        s_barrier
        ds_read_b128 v[{T}:{T+3}], v2 offset:{off}
        ds_read_b128 v[{T+4}:{T+7}], v2 offset:{off+16}
        s_waitcnt lgkmcnt(0)''')
        for i in range(0, 8, 2): a(f'v_add_f32 v{T+i}, v{T+i}, v{T+i+1}')
        a(f'v_add_f32 v{T}, v{T}, v{T+2}\n v_add_f32 v{T+4}, v{T+4}, v{T+6}\n v_add_f32 v{S}, v{T}, v{T+4}')
    a(f'v_add_f32 v{S}, v{A}, v{A+1}')
    for c in range(2, 10): a(f'v_add_f32 v{S}, v{S}, v{A+c}')
    rs(0)
    a(f'v_mul_f32 v{S}, 0x3ae38e39, v{S}')
    for c in range(10): a(f'v_sub_f32 v{A+c}, v{A+c}, v{S}')
    for c in (8, 9): a(f'v_mul_f32 v{A+c}, s44, v{A+c}')
    a(f'v_mul_f32 v{S}, v{A}, v{A}')
    for c in range(1, 10): a(f'v_fmac_f32 v{S}, v{A+c}, v{A+c}')
    rs(512)
    a(f'v_mov_b32 v7, 0x3727c5ac\n v_fmac_f32 v7, 0x3ae38e39, v{S}\n v_rsq_f32 v7, v7')
    for c in range(10): a(f'v_mul_f32 v{A+c}, v{A+c}, v7\n v_fma_f32 v{A+c}, v{A+c}, v{mr(2,c)}, v{mr(1,c)}')
    for c in range(5): a(f'v_cvt_pk_bf16_f32 v{P+c}, v{A+2*c}, v{A+2*c+1}')
    a(f's_add_u32 s17, s16, {WS_H2}'); st(P, 1, 157, 's[20:23]', 's17', fl)
```

```python
from asm import *
import os
WS_MOD, WS_H, WS_X1, WS_H2, WS_PA, WS_PB, PSZ = 0, 0x10000, 0x300000, 0x600000, 0x1000000, 0x4000000, 2359296
WS_SZ = 0x8000000
def srd(a, d, koff, nbytes):
    a(f's_load_dwordx2 s[{d}:{d+1}], s[0:1], {koff}\n s_mov_b32 s{d+2}, {nbytes}\n s_mov_b32 s{d+3}, 0x00020000')
def guard(a, n):
    l = a.label('go')
    a(f's_cmp_lt_u32 s2, {n}\n s_cbranch_scc1 {l}\n s_endpgm\n {l}:')
def unpack(a, d, s, n):
    for i in range(n):
        a(f'v_lshlrev_b32 v{d+2*i}, 16, v{s+i}\n v_and_b32 v{d+2*i+1}, 0xffff0000, v{s+i}')
def k_mod(a):
    srd(a, 4, 72, 1152); srd(a, 8, 80, 576*6912); srd(a, 12, 104, WS_SZ); srd(a, 20, 96, 256)
    a('''v_lshrrev_b32 v1, 3, v0
    v_and_b32 v2, 7, v0
    v_lshlrev_b32 v3, 4, v1
    s_mov_b32 s16, 55296
    v_mul_lo_u32 v4, v1, s16
    v_lshl_add_u32 v4, v2, 4, v4
    s_lshl_b32 s17, s2, 7
    s_waitcnt lgkmcnt(0)
    buffer_load_dwordx4 v[8:11], v3, s[4:7], 0 offen''')
    for j in range(8):
        a(f'buffer_load_dwordx4 v[{16+4*j}:{19+4*j}], v4, s[8:11], s17 offen\n s_add_u32 s17, s17, 6912')
    a('s_waitcnt vmcnt(8)')
    unpack(a, 48, 8, 4)
    for j in range(8):
        a(f'v_mul_f32 v{56+j}, 0xbfb8aa3b, v{48+j}\n v_exp_f32 v{56+j}, v{56+j}\n v_add_f32 v{56+j}, 1.0, v{56+j}\n v_rcp_f32 v{56+j}, v{56+j}\n v_mul_f32 v{48+j}, v{48+j}, v{56+j}')
    for j in range(4): a(f'v_cvt_pk_bf16_f32 v{8+j}, v{48+2*j}, v{49+2*j}')
    unpack(a, 48, 8, 4)
    for j in range(8):
        a(f's_waitcnt vmcnt({7-j})')
        unpack(a, 56, 16+4*j, 4)
        for c in range(8):
            a(f'v_mul_f32 v{64+c}, v{48+j}, v{56+c}' if j == 0 else f'v_fmac_f32 v{64+c}, v{48+j}, v{56+c}')
    a('''v_lshlrev_b32 v5, 5, v0
    ds_write_b128 v5, v[64:67]
    ds_write_b128 v5, v[68:71] offset:16
    v_and_b32 v6, 63, v0
    v_lshrrev_b32 v7, 6, v0
    v_lshlrev_b32 v6, 2, v6
    v_lshl_add_u32 v7, v7, 11, v6
    s_waitcnt lgkmcnt(0)
    s_barrier''')
    for i in range(8): a(f'ds_read_b32 v{16+i}, v7 offset:{256*i}')
    a('s_waitcnt lgkmcnt(0)')
    for i in range(1, 8): a(f'v_add_f32 v16, v16, v{16+i}')
    a('''v_lshlrev_b32 v5, 2, v0
    ds_write_b32 v5, v16 offset:18432
    s_waitcnt lgkmcnt(0)
    s_barrier
    v_readfirstlane_b32 s18, v0
    s_cmp_lt_u32 s18, 64
    s_cbranch_scc1 kmod_fin
    s_endpgm
    kmod_fin:''')
    for i in range(9): a(f'ds_read_b32 v{16+i}, v6 offset:{18432+256*i}')
    a('s_waitcnt lgkmcnt(0)')
    for i in range(1, 9): a(f'v_add_f32 v16, v16, v{16+i}')
    a('''v_cvt_pk_bf16_f32 v16, v16, v16
    v_lshlrev_b32 v16, 16, v16
    s_sub_u32 s19, s2, 9
    s_cmp_lt_u32 s19, 9
    s_cselect_b32 s24, 1.0, 0
    s_sub_u32 s19, s2, 36
    s_cmp_lt_u32 s19, 9
    s_cselect_b32 s24, 1.0, s24
    v_add_f32 v16, s24, v16
    v_cvt_pk_bf16_f32 v16, v16, v16
    v_lshlrev_b32 v16, 16, v16
    s_lshl_b32 s17, s2, 8
    buffer_store_dword v16, v6, s[12:15], s17 offen
    s_cmp_lt_u32 s2, 18
    s_cbranch_scc0 kmod_end
    s_cmp_lt_u32 s2, 9
    s_cselect_b32 s17, 32, 0
    s_cselect_b32 s18, 0, 9
    s_sub_u32 s18, s2, s18
    s_lshl_b32 s18, s18, 9
    s_add_u32 s17, s17, s18
    s_add_u32 s17, s17, 0x4000
    v_lshrrev_b32 v1, 3, v0
    v_and_b32 v2, 7, v0
    v_lshlrev_b32 v2, 2, v2
    ''' + ('''s_cmp_lt_u32 s2, 9
    s_cselect_b32 s18, 0, 16
    v_and_b32 v3, 1, v0
    v_cmp_eq_u32 vcc, 0, v3
    v_lshrrev_b32 v3, s18, v16
    v_cndmask_b32 v16, v16, v3, vcc''' if os.environ.get('DOT') else '') + '''
    v_lshl_add_u32 v1, v1, 6, v2
    buffer_store_dword v16, v1, s[12:15], s17 offen
    kmod_end:
    s_endpgm''')
def rowsum(a, v, t, ldsoff):
    a(f'''v_add_f32_dpp v{v}, v{v}, v{v} row_ror:8 row_mask:0xf bank_mask:0xf
    ds_swizzle_b32 v{t}, v{v} offset:0x401F
    s_waitcnt lgkmcnt(0)
    v_add_f32 v{v}, v{v}, v{t}
    v_mov_b32 v{t}, v{v}
    v_permlane32_swap_b32 v{v}, v{t}
    v_add_f32 v{v}, v{v}, v{t}
    ds_write_b32 v3, v{v} offset:{ldsoff}
    s_waitcnt lgkmcnt(0)
    s_barrier
    ds_read_b128 v[{t}:{t+3}], v2 offset:{ldsoff}
    ds_read_b128 v[{t+4}:{t+7}], v2 offset:{ldsoff+16}
    ds_read_b32 v{v}, v2 offset:{ldsoff+32}
    s_waitcnt lgkmcnt(0)''')
    for i in range(0, 8, 2): a(f'v_add_f32 v{t+i}, v{t+i}, v{t+i+1}')
    a(f'v_add_f32 v{t}, v{t}, v{t+2}\n v_add_f32 v{t+4}, v{t+4}, v{t+6}\n v_add_f32 v{v}, v{v}, v{t}\n v_add_f32 v{v}, v{v}, v{t+4}')
PFM = os.environ.get('PFM', 'early')
def warm(a):
        a(f'''v_lshlrev_b32 v50, 7, v0
        v_cmp_gt_u32 vcc, 0x90, v0
        s_and_saveexec_b64 s[40:41], vcc
        s_cbranch_execz pf_kv
        s_mul_i32 s17, s2, {144*128}
        buffer_load_dword v51, v50, s[24:27], s17 offen
        s_mov_b64 exec, s[40:41]
        s_waitcnt vmcnt(1)
        s_branch pf_end
        pf_kv:
        s_mov_b64 exec, s[40:41]
        v_readfirstlane_b32 s18, v0
        s_branch pf_done
        v_and_b32 v50, 63, v0
        v_lshlrev_b32 v50, 7, v50
        s_lshr_b32 s17, s2, 4
        s_lshl_b32 s17, s17, 19
        s_and_b32 s18, s2, 15
        s_lshl_b32 s18, s18, 13
        s_add_u32 s17, s17, s18
        s_add_u32 s17, s17, {1536*256}
        buffer_load_dword v51, v50, s[28:31], s17 offen
        buffer_load_dword v51, v50, s[32:35], s17 offen
        s_waitcnt vmcnt(2)
        s_branch pf_end
        pf_done:
        s_waitcnt vmcnt(0)
        pf_end:''')
def k_ln(mode):
    a = Asm()
    if mode == 1:
        a('s_cmp_lt_u32 s2, 54\n s_cbranch_scc0 ln1')
        k_mod(a)
        a('ln1:\n s_cmp_eq_u32 s2, 54\n s_cbranch_scc0 ln1b')
        srd(a, 12, 104, WS_SZ)
        a('v_lshrrev_b32 v1, 4, v0\n v_lshlrev_b32 v1, 8, v1\n v_and_b32 v2, 15, v0\n v_lshl_add_u32 v1, v2, 3, v1\n v_mov_b32 v2, 0\n v_mov_b32 v3, 0\n v_cmp_gt_u32 vcc, 0x200, v0\n s_and_saveexec_b64 s[40:41], vcc\n s_mov_b32 s17, 0x8000\n s_waitcnt lgkmcnt(0)\n buffer_store_dwordx2 v[2:3], v1, s[12:15], s17 offen\n s_endpgm')
        a('ln1b:\n s_sub_u32 s2, s2, 56')
        srd(a, 20, 96, 256); srd(a, 24, 24, 576*8192); srd(a, 28, 8, 16*524288); srd(a, 32, 16, 16*524288); srd(a, 36, 32, 4096*1152)
    guard(a, 256)
    srd(a, 4, 0, PSZ); srd(a, 12, 104, WS_SZ); srd(a, 8, 88, PSZ)
    a('''v_lshlrev_b32 v1, 4, v0
    v_and_b32 v2, 7, v0
    v_lshrrev_b32 v5, 3, v0
    s_movk_i32 s16, 1152
    v_mul_lo_u32 v4, v2, s16
    v_lshl_add_u32 v4, v5, 4, v4
    v_lshlrev_b32 v5, 5, v5
    v_lshlrev_b32 v2, 6, v2
    v_lshrrev_b32 v3, 6, v0
    v_lshl_add_u32 v3, v3, 2, v2
    s_mul_i32 s16, s2, 9216
    s_waitcnt lgkmcnt(0)''')
    X, M, P, A, T = (8, 16, 48, 112, 120) if mode != 1 else (8, 16, 12, 32, 40)
    if mode == 5:
        a(f's_add_u32 s17, s16, {WS_X1}\n buffer_load_dwordx4 v[{X}:{X+3}], v1, s[12:15], s17 offen', 'x')
    else:
        a(f'buffer_load_dwordx4 v[{X}:{X+3}], v4, s[4:7], s16 offen', 'x')
    if mode != 1:
        a(f's_add_u32 s17, s16, {WS_PA if mode == 3 else WS_PB}')
        for p in range(16):
            a(f'buffer_load_dwordx4 v[{P+4*p}:{P+4*p+3}], v1, s[12:15], s17 offen', f'p{p}')
            if p < 15: a(f's_add_u32 s17, s17, {PSZ}')
    segs = {1: [0, 1], 3: [2, 3, 4], 5: [5]}[mode]
    def modloads(fl=''):
      for i, sg in enumerate(segs):
        a(f's_movk_i32 s18, {sg*2304}\n buffer_load_dwordx4 v[{M+8*i}:{M+8*i+3}], v5, s[12:15], s18 offen {fl}\n buffer_load_dwordx4 v[{M+8*i+4}:{M+8*i+7}], v5, s[12:15], s18 offen offset:16 {fl}', 'm')
    if mode != 1: modloads()
    if mode != 1:
        for p in range(16):
            a.wvm(f'p{p}')
            if p == 0: unpack(a, A, P, 4)
            else:
                unpack(a, T, P+4*p, 4)
                for c in range(8): a(f'v_add_f32 v{A+c}, v{A+c}, v{T+c}')
        a.wvm('m')
        unpack(a, T, X, 4)
        for c in range(8): a(f'v_fma_f32 v{A+c}, v{A+c}, v{M+c}, v{T+c}')
        for c in range(4): a(f'v_cvt_pk_bf16_f32 v{X+c}, v{A+2*c}, v{A+2*c+1}')
        if mode == 5:
            a(f'buffer_store_dwordx4 v[{X}:{X+3}], v4, s[8:11], s16 offen\n s_endpgm')
            return a, 136, 256, 576, 0
        a(f's_add_u32 s17, s16, {WS_X1}\n buffer_store_dwordx4 v[{X}:{X+3}], v1, s[12:15], s17 offen')
        M += 8
    else:
        if PFM == 'early': warm(a)
        else: a.wvm('x')
    unpack(a, A, X, 4)
    S = 6
    a(f'v_add_f32 v{S}, v{A}, v{A+1}')
    for c in range(2, 8): a(f'v_add_f32 v{S}, v{S}, v{A+c}')
    rowsum(a, S, T, 0)
    a(f'v_mul_f32 v{S}, 0x3ae38e39, v{S}')
    for c in range(8): a(f'v_sub_f32 v{A+c}, v{A+c}, v{S}')
    a(f'v_mul_f32 v{S}, v{A}, v{A}')
    for c in range(1, 8): a(f'v_fmac_f32 v{S}, v{A+c}, v{A+c}')
    rowsum(a, S, T, 512)
    a(f'v_mov_b32 v7, 0x3727c5ac\n v_fmac_f32 v7, 0x3ae38e39, v{S}\n v_rsq_f32 v7, v7')
    if mode == 1:
        for c in range(8): a(f'v_mul_f32 v{A+c}, v{A+c}, v7')
    else:
        a.wvm('m')
        for c in range(8): a(f'v_mul_f32 v{A+c}, v{A+c}, v7\n v_fma_f32 v{A+c}, v{A+c}, v{M+8+c}, v{M+c}')
    for c in range(4): a(f'v_cvt_pk_bf16_f32 v{P+c}, v{A+2*c}, v{A+2*c+1}')
    a(f's_add_u32 s17, s16, {WS_H if mode == 1 else WS_H2}\n buffer_store_dwordx4 v[{P}:{P+3}], v1, s[12:15], s17 offen\n s_endpgm')
    return (a, 136, 256, 576, 1024) if mode != 1 else (a, 72, 312, 576, 18432+2304)
def gsig(a):
    a('''s_waitcnt vmcnt(0) lgkmcnt(0)
    s_barrier
    s_lshl_b32 s45, s26, 8
    s_add_u32 s45, s45, 0x8040
    s_cmp_eq_u32 s24, 0
    s_cbranch_scc0 gs_d
    v_mov_b32 v250, 1
    v_mov_b32 v251, 0
    s_mov_b64 exec, 1
    buffer_atomic_add v250, v251, s[20:23], s45 offen sc1
    s_mov_b64 exec, -1
    gs_d:''')
    a.vm = []; a.lg = []; a.lgdone = 0
def gwait(a):
    n = len(a.vm)
    a('''s_cmp_eq_u32 s24, 0
    s_cbranch_scc0 gw_d
    s_mov_b32 s44, 0x40000
    s_mov_b64 exec, 1
    gw_p:
    buffer_load_dword v250, v251, s[20:23], s45 offen sc1
    s_waitcnt vmcnt(0)
    v_readfirstlane_b32 s47, v250
    s_sub_u32 s44, s44, 1
    s_cbranch_scc1 gw_x
    s_cmp_ge_u32 s47, 16
    s_cbranch_scc1 gw_x
    s_sleep 2
    s_branch gw_p
    gw_x:
    s_mov_b64 exec, -1
    gw_d:
    s_barrier''')
    del a.vm[n:]
def tail(a, mode, fl=''):
    srd(a, 4, 0, PSZ); srd(a, 8, 88, PSZ)
    X, M, P, A, T, XE, ME, PE = 8, 16, 48, 112, 124, 12, 40, 140
    a(f'''v_mbcnt_lo_u32_b32 v0, -1, 0
    v_mbcnt_hi_u32_b32 v0, -1, v0
    s_lshl_b32 s16, s24, 6
    v_add_u32 v0, s16, v0
    v_lshlrev_b32 v1, 4, v0
    v_and_b32 v2, 7, v0
    v_lshrrev_b32 v5, 3, v0
    v_mul_u32_u24 v4, 1152, v2
    v_lshl_add_u32 v158, v5, 2, v4
    v_add_u32 v158, 1024, v158
    v_lshl_add_u32 v4, v5, 4, v4
    v_lshlrev_b32 v159, 3, v5
    v_add_u32 v159, 2048, v159
    v_and_b32 v157, 3, v5
    v_lshlrev_b32 v157, 2, v157
    v_lshl_add_u32 v157, v2, 4, v157
    v_lshrrev_b32 v3, 5, v0
    v_lshl_add_u32 v157, v3, 7, v157
    v_add_u32 v157, 8192, v157
    v_lshlrev_b32 v5, 5, v5
    v_lshlrev_b32 v2, 6, v2
    s_lshl_b32 s17, s24, 2
    v_add_u32 v3, s17, v2
    s_lshl_b32 s16, s26, 4
    s_add_u32 s16, s16, s25
    s_mul_i32 s16, s16, 9216
    s_cmp_lt_u32 s24, 4
    s_cselect_b32 s44, 1.0, 0
    s_cselect_b64 s[40:41], -1, 0
    v_mov_b32 v{XE}, 0''')
    for i in range(16): a(f'v_mov_b32 v{PE+i}, 0')
    segs = {3: [2, 3, 4], 5: [5]}[mode]
    for i in range(2*len(segs)): a(f'v_mov_b32 v{ME+i}, 0')
    base = WS_PA if mode == 3 else WS_PB
    nm = f'pg{mode}'
    a(f'''v_mov_b32 v7, 1024
    v_mov_b32 v6, 0
    ds_write_b32 v7, v6
    s_mov_b32 s45, 0
    s_mov_b32 s46, 0
    s_add_u32 s47, s16, {base}
    s_waitcnt vmcnt(0) lgkmcnt(0)
    s_barrier''')
    a.stamp()
    a(f'''s_cmp_eq_u32 s24, 0
    s_cbranch_scc0 {nm}_d
    s_lshl_b32 s17, s26, 8
    s_add_u32 s17, s17, {0x8000 + (0 if mode == 3 else 4096)}
    s_lshl_b32 s19, s25, 2
    s_add_u32 s19, s19, s17
    s_mov_b32 s18, 0x40000
    v_mov_b32 v6, 1
    v_lshlrev_b32 v156, 2, v0
    s_mov_b64 exec, 1
    buffer_store_dword v6, v156, s[20:23], s19 offen sc1
    s_mov_b64 exec, 0xffff
    {nm}_p:
    buffer_load_dword v6, v156, s[20:23], s17 offen sc1
    s_waitcnt vmcnt(0)
    v_cmp_eq_u32 vcc, 1, v6
    s_sub_u32 s18, s18, 1
    s_cselect_b32 s45, 0xffff, vcc_lo
    v_mov_b32 v6, s45
    ds_write_b32 v7, v6
    s_cmp_eq_u32 s45, 0xffff
    s_cbranch_scc1 {nm}_x
    s_sleep 2
    s_branch {nm}_p
    {nm}_x:
    s_mov_b64 exec, -1
    {nm}_d:''')
    a(f's_waitcnt lgkmcnt(0)\n s_add_u32 s17, s16, {WS_X1}\n s_mov_b64 exec, s[40:41]')
    xs = 'v157, s[20:23], s17' if mode == 5 else 'v158, s[4:7], s16'
    a(f'buffer_load_dword v{XE}, {xs} offen {fl if mode == 5 else ""}')
    for i, sg in enumerate(segs): a(f's_movk_i32 s18, {sg*2304}\n buffer_load_dwordx2 v[{ME+2*i}:{ME+2*i+1}], v159, s[20:23], s18 offen')
    a('s_mov_b64 exec, -1')
    xs = 'v1, s[20:23], s17' if mode == 5 else 'v4, s[4:7], s16'
    a(f'buffer_load_dwordx4 v[{X}:{X+3}], {xs} offen {fl if mode == 5 else ""}')
    for i, sg in enumerate(segs):
        a(f's_movk_i32 s18, {sg*2304}\n buffer_load_dwordx4 v[{M+8*i}:{M+8*i+3}], v5, s[20:23], s18 offen\n buffer_load_dwordx4 v[{M+8*i+4}:{M+8*i+7}], v5, s[20:23], s18 offen offset:16')
    for k in range(16):
        a(f'''{nm}_l{k}:
        s_andn2_b32 s18, s45, s46
        s_cbranch_scc1 {nm}_g{k}
        s_sleep 1
        ds_read_b32 v6, v7
        s_waitcnt lgkmcnt(0)
        v_readfirstlane_b32 s45, v6
        s_branch {nm}_l{k}
        {nm}_g{k}:
        s_ff1_i32_b32 s18, s18
        s_bitset1_b32 s46, s18
        s_mul_i32 s17, s18, {PSZ}
        s_add_u32 s17, s17, s47
        s_mov_b64 exec, s[40:41]
        buffer_load_dword v{PE+k}, v157, s[20:23], s17 offen sc1
        s_mov_b64 exec, -1
        buffer_load_dwordx4 v[{P+4*k}:{P+4*k+3}], v1, s[20:23], s17 offen sc1''')
    a.stamp()
    for p in range(16):
        a(f's_waitcnt vmcnt({15-p})')
        if p == 0: unpack(a, A, P, 4); unpack(a, A+8, PE, 1)
        else:
            unpack(a, T, P+4*p, 4); unpack(a, T+8, PE+p, 1)
            for c in range(10): a(f'v_add_f32 v{A+c}, v{A+c}, v{T+c}')
    unpack(a, T, X, 4); unpack(a, T+8, XE, 1)
    mr = lambda i, c: M+8*i+c if c < 8 else ME+2*i+c-8
    for c in range(10): a(f'v_fma_f32 v{A+c}, v{A+c}, v{mr(0,c)}, v{T+c}')
    for c in range(5): a(f'v_cvt_pk_bf16_f32 v{X+c}, v{A+2*c}, v{A+2*c+1}')
    def st(R, om, oe, sd, so, f):
        a(f'buffer_store_dwordx4 v[{R}:{R+3}], v{om}, {sd}, {so} offen {f}\n s_mov_b64 exec, s[40:41]\n buffer_store_dword v{R+4}, v{oe}, {sd}, {so} offen {f}\n s_mov_b64 exec, -1')
    if mode == 5: return st(X, 4, 158, 's[8:11]', 's16', '')
    a(f's_add_u32 s17, s16, {WS_X1}'); st(X, 1, 157, 's[20:23]', 's17', fl)
    unpack(a, A, X, 5)
    S = 6
    def rs(off):
        a(f'''v_add_f32_dpp v{S}, v{S}, v{S} row_ror:8 row_mask:0xf bank_mask:0xf
        ds_swizzle_b32 v{T}, v{S} offset:0x401F
        s_waitcnt lgkmcnt(0)
        v_add_f32 v{S}, v{S}, v{T}
        v_mov_b32 v{T}, v{S}
        v_permlane32_swap_b32 v{S}, v{T}
        v_add_f32 v{S}, v{S}, v{T}
        ds_write_b32 v3, v{S} offset:{off}
        s_waitcnt lgkmcnt(0)
        s_barrier
        ds_read_b128 v[{T}:{T+3}], v2 offset:{off}
        ds_read_b128 v[{T+4}:{T+7}], v2 offset:{off+16}
        s_waitcnt lgkmcnt(0)''')
        for i in range(0, 8, 2): a(f'v_add_f32 v{T+i}, v{T+i}, v{T+i+1}')
        a(f'v_add_f32 v{T}, v{T}, v{T+2}\n v_add_f32 v{T+4}, v{T+4}, v{T+6}\n v_add_f32 v{S}, v{T}, v{T+4}')
    a(f'v_add_f32 v{S}, v{A}, v{A+1}')
    for c in range(2, 10): a(f'v_add_f32 v{S}, v{S}, v{A+c}')
    rs(0)
    a(f'v_mul_f32 v{S}, 0x3ae38e39, v{S}')
    for c in range(10): a(f'v_sub_f32 v{A+c}, v{A+c}, v{S}')
    for c in (8, 9): a(f'v_mul_f32 v{A+c}, s44, v{A+c}')
    a(f'v_mul_f32 v{S}, v{A}, v{A}')
    for c in range(1, 10): a(f'v_fmac_f32 v{S}, v{A+c}, v{A+c}')
    rs(512)
    a(f'v_mov_b32 v7, 0x3727c5ac\n v_fmac_f32 v7, 0x3ae38e39, v{S}\n v_rsq_f32 v7, v7')
    for c in range(10): a(f'v_mul_f32 v{A+c}, v{A+c}, v7\n v_fma_f32 v{A+c}, v{A+c}, v{mr(2,c)}, v{mr(1,c)}')
    for c in range(5): a(f'v_cvt_pk_bf16_f32 v{P+c}, v{A+2*c}, v{A+2*c+1}')
    a(f's_add_u32 s17, s16, {WS_H2}'); st(P, 1, 157, 's[20:23]', 's17', fl)
```
